```python
import torch

def _softmax(x, axis=-1):
    return torch.softmax(x, dim=axis)
def _gelu(x):
    return torch.nn.functional.gelu(x, approximate="tanh")
def _silu(x):
    return torch.nn.functional.silu(x)
def _sigmoid(x):
    return torch.sigmoid(x)
def _layernorm(x, axis=-1, eps=1e-5):
    m = x.mean(dim=axis, keepdim=True)
    v = x.var(dim=axis, keepdim=True, unbiased=False)
    return (x - m) / torch.sqrt(v + eps)
def _scatter_add(tgt, idx, src, axis=0):
    return tgt.clone().index_add_(axis, idx, src)
def _segment_sum(src, seg, n):
    out = torch.zeros((n,) + src.shape[1:], dtype=src.dtype)
    return out.index_add_(0, seg, src)
def _pad(x, pw):
    flat = tuple(v for pair in reversed(pw) for v in pair)
    return torch.nn.functional.pad(x, flat)

kernel_name = 'concat_heads__mha_block_cached__compressed_kv_cla__decode'

def setup_inputs():

    _w = (lambda a: (lambda t: t.to(torch.bfloat16) if t.is_floating_point() else t)(torch.as_tensor(a)))
    def _A_setup():
        B, Sq, D = 2, 1, 512
        H, Sk, Dh = 32, 4096, 128
        return {
            "x": _w((lambda *s: torch.randn(*s, dtype=torch.bfloat16) * 1.6)(B, Sq, D)),
            "k_cache": _w((lambda *s: torch.randn(*s, dtype=torch.bfloat16) * 1.6)(B, H, Sk, Dh)),
            "v_cache": _w((lambda *s: torch.randn(*s, dtype=torch.bfloat16) * 0.05)(B, H, Sk, Dh)),
            "wq": _w((lambda *s: torch.randn(*s, dtype=torch.bfloat16) * 1.6)(D, H * Dh) * (D ** -0.5)),
            "wo": _w((lambda *s: torch.randn(*s, dtype=torch.bfloat16) * 0.05)(H * Dh, D) * ((H * Dh) ** -0.5)),
        }
    _A_in = _A_setup()

    def _B_setup():
        B, H, Sq, Sk, D, M = 2, 32, 1, 4096, 128, 512
        Dc = 4 * D
        return {
            "x": _w((lambda *s: torch.randn(*s, dtype=torch.bfloat16) * 3.2)(B, Sq, M)),
            "c_kv": _w((lambda *s: torch.randn(*s, dtype=torch.bfloat16) * 0.1)(B, Sk, Dc)),
            "w_q": _w((lambda *s: torch.randn(*s, dtype=torch.bfloat16) * 6.4)(M, H, D) * (M ** -0.5)),
            "w_uk": _w((lambda *s: torch.randn(*s, dtype=torch.bfloat16) * 6.4)(Dc, H, D) * (Dc ** -0.5)),
            "w_uv": _w((lambda *s: torch.randn(*s, dtype=torch.bfloat16) * 0.1)(Dc, H, D) * (Dc ** -0.5)),
            "w_o": _w((lambda *s: torch.randn(*s, dtype=torch.bfloat16) * 0.1)(H, D, M) * ((H * D) ** -0.5)),
        }
    _B_in = _B_setup()

    return {
        "A_x": _A_in["x"],
        "A_k_cache": _A_in["k_cache"],
        "A_v_cache": _A_in["v_cache"],
        "A_wq": _A_in["wq"],
        "A_wo": _A_in["wo"],
        "B_x": _B_in["x"],
        "B_c_kv": _B_in["c_kv"],
        "B_w_q": _B_in["w_q"],
        "B_w_uk": _B_in["w_uk"],
        "B_w_uv": _B_in["w_uv"],
        "B_w_o": _B_in["w_o"],
    }

def reference(A_x, A_k_cache, A_v_cache, A_wq, A_wo, B_x, B_c_kv, B_w_q, B_w_uk, B_w_uv, B_w_o):
    def _A_ref(x, k_cache, v_cache, wq, wo):
        B, Sq, D = x.shape
        H, Dh = 32, 128
        q = (lambda x, *d: x.permute(*d))((x @ wq).reshape(B, Sq, H, Dh), 0, 2, 1, 3)
        scores = torch.einsum("bhqd,bhkd->bhqk", q, k_cache) * (Dh ** -0.5)
        p = _softmax(scores, axis=-1)
        o = torch.einsum("bhqk,bhkd->bhqd", p, v_cache)
        return (lambda x, *d: x.permute(*d))(o, 0, 2, 1, 3).reshape(B, Sq, H * Dh) @ wo

    def _B_ref(x, c_kv, w_q, w_uk, w_uv, w_o):
        B, Sq, M = x.shape[0], x.shape[1], x.shape[2]
        Sk = c_kv.shape[1]
        H, D = w_q.shape[1], w_q.shape[2]
        q = torch.einsum("bqm,mhd->bhqd", x, w_q)
        k = torch.einsum("bkc,chd->bhkd", c_kv, w_uk)
        v = torch.einsum("bkc,chd->bhkd", c_kv, w_uv)
        scores = torch.einsum("bhqd,bhkd->bhqk", q, k) * (D ** -0.5)
        off = Sk - Sq
        qi = torch.arange(Sq)[:, None]
        kj = torch.arange(Sk)[None, :]
        cmask = kj <= (qi + off)
        scores = torch.where(cmask[None, None], scores, -1e9)
        p = _softmax(scores, axis=-1)
        ctx = torch.einsum("bhqk,bhkd->bhqd", p, v)
        return torch.einsum("bhqd,hdm->bqm", ctx, w_o)

    a = _A_ref(A_x, A_k_cache, A_v_cache, A_wq, A_wo)
    b = _B_ref(B_x, B_c_kv, B_w_q, B_w_uk, B_w_uv, B_w_o)
    return torch.concatenate([a, b], axis=-1)
```

```python
from gen_common import *

S_WG = 3
S_H, S_B, S_S, S_W = 4, 5, 6, 7
S_OKV, S_OWQ, S_OWO = 8, 9, 10
S_T0, S_T1, S_T2 = 11, 12, 13
S_EX = 14
SRD_K, SRD_V, SRD_WQ, SRD_WO, SRD_X, SRD_WS = 44, 48, 52, 56, 60, 64
S_SCALE, S_LOG2E, S_NLOG2E, S_SELLO, S_SELHI = 68, 69, 70, 71, 72
S_OP = 76

V_TID, V_L, V_R, V_CP, V_L16 = 0, 1, 2, 3, 4
V_WQO, V_XO, V_A0 = 5, 6, 7
V_ACC = 8
V_QF = 16
V_M, V_LS = 20, 21
V_SC = 22
V_T = 26
V_U = 34
V_AL, V_NML = 38, 39
V_XP = 40
V_T2 = 56
V_RING = 64
V_big = 192
A_VGPRS = 232

L_Q1 = 0
L_QB = 8192
L_ST = 8704
L_ACC = 12288
L_Y = 20480
A_LDS = 28672

NT = " nt"


def slot(i):
    return V_RING + 32 * i


def common_consts(a):
    a.e(f"s_mov_b32 s{S_SCALE}, 0x{SCALE:08x}")
    a.e(f"s_mov_b32 s{S_LOG2E}, 0x{LOG2E:08x}")
    a.e(f"s_mov_b32 s{S_NLOG2E}, 0x{NEGLOG2E:08x}")
    a.e(f"s_mov_b32 s{S_SELLO}, 0x05040100")
    a.e(f"s_mov_b32 s{S_SELHI}, 0x07060302")


def lane_ids(a):
    a.e(f"v_and_b32 v{V_L}, 63, v0")
    a.e(f"v_lshrrev_b32 v{V_R}, 4, v{V_L}")
    a.e(f"v_and_b32 v{V_CP}, 15, v{V_L}")
    a.e(f"v_lshlrev_b32 v{V_L16}, 4, v{V_L}")
    a.e(f"v_readfirstlane_b32 s{S_W}, v0")
    a.nop(4)
    a.e(f"s_lshr_b32 s{S_W}, s{S_W}, 6")


def wrs_pairs(a, wa, wb, wpair, accs, tmp):
    for k in range(4):
        a.e(f"v_perm_b32 v{tmp}, v{wb + k}, v{wa + k}, s{S_SELLO}")
        a.e(f"v_perm_b32 v{tmp + 1}, v{wb + k}, v{wa + k}, s{S_SELHI}")
        for wp, ac in zip(wpair, accs):
            a.e(f"v_dot2_f32_bf16 v{ac + 2 * k}, v{tmp}, {wp}, v{ac + 2 * k}")
            a.e(f"v_dot2_f32_bf16 v{ac + 2 * k + 1}, v{tmp + 1}, {wp}, v{ac + 2 * k + 1}")


def round_scale4(a, sc, u, t):
    a.e(f"v_cvt_pk_bf16_f32 v{t}, v{sc}, v{sc + 1}")
    a.e(f"v_cvt_pk_bf16_f32 v{t + 1}, v{sc + 2}, v{sc + 3}")
    a.e(f"v_lshlrev_b32 v{u}, 16, v{t}")
    a.e(f"v_and_b32 v{u + 1}, 0xffff0000, v{t}")
    a.e(f"v_lshlrev_b32 v{u + 2}, 16, v{t + 1}")
    a.e(f"v_and_b32 v{u + 3}, 0xffff0000, v{t + 1}")
    for i in range(4):
        a.e(f"v_mul_f32 v{u + i}, s{S_SCALE}, v{u + i}")
    a.e(f"v_cvt_pk_bf16_f32 v{t}, v{u}, v{u + 1}")
    a.e(f"v_cvt_pk_bf16_f32 v{t + 1}, v{u + 2}, v{u + 3}")
    a.e(f"v_lshlrev_b32 v{u}, 16, v{t}")
    a.e(f"v_and_b32 v{u + 1}, 0xffff0000, v{t}")
    a.e(f"v_lshlrev_b32 v{u + 2}, 16, v{t + 1}")
    a.e(f"v_and_b32 v{u + 3}, 0xffff0000, v{t + 1}")


S_STAMP = 92
WS_DIAG = 0x800000


def stamp(a, k, on):
    if on:
        a.e(f"s_memtime s[{S_STAMP + 2 * k}:{S_STAMP + 2 * k + 1}]")


def dump_stamps(a, srd, wgreg, n, extra_rt=None):
    a.e("s_waitcnt lgkmcnt(0)")
    a.e(f"s_memrealtime s[{S_STAMP + 2 * n}:{S_STAMP + 2 * n + 1}]")
    a.e("s_waitcnt lgkmcnt(0)")
    a.e(f"s_lshl_b32 s{S_T1}, s{wgreg}, 6")
    a.e(f"s_add_u32 s{S_T1}, s{S_T1}, 0x{WS_DIAG:x}")
    a.e("v_cmp_eq_u32 vcc, 0, v0")
    a.e(f"s_and_saveexec_b64 s[{S_EX}:{S_EX + 1}], vcc")
    for k in range(n + 1):
        a.e(f"v_mov_b32 v{V_T + 1}, {4 * k}")
        a.e(f"v_mov_b32 v{V_T + 2}, s{S_STAMP + 2 * k}")
        a.e(f"buffer_store_dword v{V_T + 2}, v{V_T + 1}, s[{srd}:{srd + 3}], s{S_T1} offen")
    a.e(f"s_mov_b64 exec, s[{S_EX}:{S_EX + 1}]")


def emit_role_a(a, sc="", nt=NT, diag=False, interleave=False):
    a.c("================ ROLE A ================")
    a.e(f"s_and_b32 s{S_T0}, s{S_WG}, 7")
    a.e(f"s_lshr_b32 s{S_T1}, s{S_WG}, 3")
    a.e(f"s_lshr_b32 s{S_T2}, s{S_T1}, 3")
    a.e(f"s_lshl_b32 s{S_T0}, s{S_T0}, 2")
    a.e(f"s_add_u32 s{S_H}, s{S_T0}, s{S_T2}")
    a.e(f"s_and_b32 s{S_T1}, s{S_T1}, 7")
    a.e(f"s_lshr_b32 s{S_B}, s{S_T1}, 2")
    a.e(f"s_and_b32 s{S_S}, s{S_T1}, 3")
    stamp(a, 0, diag)
    lane_ids(a)
    common_consts(a)
    make_srd(a, SRD_K, P_AK, 0x4000000)
    make_srd(a, SRD_V, P_AV, 0x4000000)
    make_srd(a, SRD_WQ, P_AWQ, 0x400000)
    make_srd(a, SRD_WO, P_AWO, 0x400000)
    make_srd(a, SRD_X, P_AX, 2048)
    make_srd(a, SRD_WS, P_WS, WS_BYTES)
    a.e(f"s_lshl_b32 s{S_T0}, s{S_B}, 5")
    a.e(f"s_add_u32 s{S_T0}, s{S_T0}, s{S_H}")
    a.e(f"s_lshl_b32 s{S_T0}, s{S_T0}, 12")
    if interleave == 2:
        a.e(f"s_lshl_b32 s{S_T1}, s{S_S}, 6")
        a.e(f"s_add_u32 s{S_T0}, s{S_T0}, s{S_T1}")
        a.e(f"s_lshl_b32 s{S_T1}, s{S_W}, 4")
    else:
        a.e(f"s_lshl_b32 s{S_T1}, s{S_S}, 10")
        a.e(f"s_add_u32 s{S_T0}, s{S_T0}, s{S_T1}")
        a.e(f"s_lshl_b32 s{S_T1}, s{S_W}, {4 if interleave else 8}")
    a.e(f"s_add_u32 s{S_T0}, s{S_T0}, s{S_T1}")
    a.e(f"s_lshl_b32 s{S_OKV}, s{S_T0}, 8")
    a.e(f"s_lshl_b32 s{S_T0}, s{S_W}, 20")
    a.e(f"s_lshl_b32 s{S_T1}, s{S_H}, 8")
    a.e(f"s_add_u32 s{S_OWQ}, s{S_T0}, s{S_T1}")
    a.e(f"s_lshl_b32 s{S_T0}, s{S_B}, 10")
    a.e(f"s_lshl_b32 s{S_T1}, s{S_W}, 8")
    a.e(f"s_add_u32 s{S_T2}, s{S_T0}, s{S_T1}")
    a.e(f"s_lshl_b32 s{S_T0}, s{S_H}, 17")
    a.e(f"s_lshl_b32 s{S_T1}, s{S_W}, 15")
    a.e(f"s_add_u32 s{S_OWO}, s{S_T0}, s{S_T1}")
    a.e(f"v_lshlrev_b32 v{V_WQO}, 18, v{V_R}")
    a.e(f"v_lshl_add_u32 v{V_WQO}, v{V_CP}, 4, v{V_WQO}")
    a.e(f"v_lshlrev_b32 v{V_XO}, 6, v{V_R}")
    for i in range(4):
        a.vm(f"buffer_load_dwordx4 v[{V_XP + 4 * i}:{V_XP + 4 * i + 3}], v{V_XO}, s[{SRD_X}:{SRD_X + 3}], s{S_T2} offen offset:{16 * i}", "x")
    for jl in range(32):
        r0 = V_RING + 4 * jl
        a.vm(f"buffer_load_dwordx4 v[{r0}:{r0 + 3}], v{V_WQO}, s[{SRD_WQ}:{SRD_WQ + 3}], s{S_OWQ} offen", f"wq{jl // 8}")
        a.e(f"s_add_u32 s{S_OWQ}, s{S_OWQ}, 8192")
    for i in range(8):
        a.e(f"v_mov_b32 v{V_ACC + i}, 0")

    def issue_kv(t, which):
        sl = slot(t % 4) + (16 if which == "V" else 0)
        srd = SRD_V if which == "V" else SRD_K
        for j in range(4):
            a.vm(f"buffer_load_dwordx4 v[{sl + 4 * j}:{sl + 4 * j + 3}], v{V_L16}, s[{srd}:{srd + 3}], s{S_OKV} offen offset:{1024 * j}{nt}", f"{which}{t}")

    def advance_kv():
        a.e(f"s_add_u32 s{S_OKV}, s{S_OKV}, {(4096, 16384, 65536)[int(interleave)]}")

    def issue_wo(bt):
        sl = slot(bt)
        for i in range(8):
            a.vm(f"buffer_load_dwordx4 v[{sl + 4 * i}:{sl + 4 * i + 3}], v{V_L16}, s[{SRD_WO}:{SRD_WO + 3}], s{S_OWO} offen", f"wo{bt}")
            a.e(f"s_add_u32 s{S_OWO}, s{S_OWO}, 1024")

    a.wait_vm("x")
    for bt in range(4):
        a.wait_vm(f"wq{bt}")
        for i in range(4):
            jl = 8 * bt + 2 * i
            wrs_pairs(a, V_RING + 4 * jl, V_RING + 4 * (jl + 1), [f"v{V_XP + jl // 2}"], [V_ACC], V_T)
        issue_kv(bt, "K")
        issue_kv(bt, "V")
        advance_kv()
    a.nop(4)
    a.c("q reduce")
    a.e(f"v_lshlrev_b32 v{V_A0}, 2, v{V_R}")
    a.e(f"s_lshl_b32 s{S_T0}, s{S_W}, 4")
    a.e(f"v_add_u32 v{V_A0}, s{S_T0}, v{V_A0}")
    a.e(f"v_lshlrev_b32 v{V_T}, 7, v{V_A0}")
    a.e(f"v_lshl_add_u32 v{V_T}, v{V_CP}, 5, v{V_T}")
    a.e(f"ds_write_b128 v{V_T}, v[{V_ACC}:{V_ACC + 3}] offset:{L_Q1}")
    a.e(f"ds_write_b128 v{V_T}, v[{V_ACC + 4}:{V_ACC + 7}] offset:{L_Q1 + 16}")
    a.barrier()
    a.e(f"v_and_b32 v{V_T}, 127, v0")
    a.e(f"v_lshlrev_b32 v{V_T}, 2, v{V_T}")
    for s_ in range(16):
        a.e(f"ds_read_b32 v{V_XP + s_}, v{V_T} offset:{L_Q1 + 512 * s_}")
    a.lgkm0()
    a.e(f"v_add_f32 v{V_T + 1}, v{V_XP}, v{V_XP + 1}")
    for k in range(2, 16):
        a.e(f"v_add_f32 v{V_T + 1}, v{V_T + 1}, v{V_XP + k}")
    a.e(f"v_cvt_pk_bf16_f32 v{V_T + 1}, v{V_T + 1}, v{V_T + 1}")
    a.e(f"v_lshrrev_b32 v{V_T}, 1, v{V_T}")
    a.e(f"ds_write_b16 v{V_T}, v{V_T + 1} offset:{L_QB}")
    a.barrier()
    a.e(f"v_lshlrev_b32 v{V_T}, 4, v{V_CP}")
    a.e(f"ds_read_b128 v[{V_QF}:{V_QF + 3}], v{V_T} offset:{L_QB}")
    a.e(f"v_mov_b32 v{V_M}, 0xff800000")
    a.e(f"v_mov_b32 v{V_LS}, 0")
    for i in range(8):
        a.e(f"v_mov_b32 v{V_ACC + i}, 0")
    a.lgkm0()

    stamp(a, 1, diag)
    for t in range(16):
        sl = slot(t % 4)
        a.c(f"tile {t}")
        a.wait_vm(f"K{t}")
        for i in range(4):
            for j in range(4):
                src2 = "0" if i == 0 else f"v{V_SC + j}"
                a.e(f"v_dot2_f32_bf16 v{V_SC + j}, v{sl + 4 * j + i}, v{V_QF + i}, {src2}")
        for step in (8, 4, 2, 1):
            for j in range(4):
                a.e(f"v_add_f32_dpp v{V_SC + j}, v{V_SC + j}, v{V_SC + j} row_ror:{step} row_mask:0xf bank_mask:0xf")
        if t + 4 < 16:
            issue_kv(t + 4, "K")
        round_scale4(a, V_SC, V_U, V_T)
        a.e(f"v_max3_f32 v{V_T}, v{V_U}, v{V_U + 1}, v{V_U + 2}")
        a.e(f"v_max3_f32 v{V_T}, v{V_T}, v{V_U + 3}, v{V_M}")
        a.e(f"v_sub_f32 v{V_T + 1}, v{V_M}, v{V_T}")
        a.e(f"v_mul_f32 v{V_NML}, s{S_NLOG2E}, v{V_T}")
        a.e(f"v_mul_f32 v{V_T + 1}, s{S_LOG2E}, v{V_T + 1}")
        a.e(f"v_mov_b32 v{V_M}, v{V_T}")
        for i in range(4):
            a.e(f"v_fma_f32 v{V_U + i}, v{V_U + i}, s{S_LOG2E}, v{V_NML}")
        a.e(f"v_exp_f32 v{V_AL}, v{V_T + 1}")
        for i in range(4):
            a.e(f"v_exp_f32 v{V_U + i}, v{V_U + i}")
        a.nop(1)
        a.e(f"v_fma_f32 v{V_LS}, v{V_LS}, v{V_AL}, v{V_U}")
        for i in range(8):
            a.e(f"v_mul_f32 v{V_ACC + i}, v{V_AL}, v{V_ACC + i}")
        a.e(f"v_add_f32 v{V_T}, v{V_U + 1}, v{V_U + 2}")
        a.e(f"v_add_f32 v{V_T}, v{V_T}, v{V_U + 3}")
        a.e(f"v_add_f32 v{V_LS}, v{V_LS}, v{V_T}")
        a.wait_vm(f"V{t}")
        vb = sl + 16
        for j in range(4):
            for k in range(4):
                a.e(f"v_lshlrev_b32 v{V_T + k}, 16, v{vb + 4 * j + k}")
                a.e(f"v_and_b32 v{V_T + 4 + k}, 0xffff0000, v{vb + 4 * j + k}")
            for k in range(4):
                a.e(f"v_fmac_f32 v{V_ACC + 2 * k}, v{V_U + j}, v{V_T + k}")
                a.e(f"v_fmac_f32 v{V_ACC + 2 * k + 1}, v{V_U + j}, v{V_T + 4 + k}")
        if t + 4 < 16:
            issue_kv(t + 4, "V")
            advance_kv()
        else:
            issue_wo(t + 4 - 16)

    stamp(a, 2, diag)
    a.c("WG combine")
    a.e(f"ds_write_b32 v{V_A0}, v{V_M} offset:{L_ST}")
    a.e(f"ds_write_b32 v{V_A0}, v{V_LS} offset:{L_ST + 64}")
    a.e(f"v_lshlrev_b32 v{V_T}, 7, v{V_A0}")
    a.e(f"v_lshl_add_u32 v{V_T}, v{V_CP}, 5, v{V_T}")
    a.e(f"ds_write_b128 v{V_T}, v[{V_ACC}:{V_ACC + 3}] offset:{L_ACC}")
    a.e(f"ds_write_b128 v{V_T}, v[{V_ACC + 4}:{V_ACC + 7}] offset:{L_ACC + 16}")
    a.barrier()
    VM_ = V_big
    VL_ = V_big + 16
    a.e(f"v_mov_b32 v{V_T}, 0")
    for i in range(4):
        a.e(f"ds_read_b128 v[{VM_ + 4 * i}:{VM_ + 4 * i + 3}], v{V_T} offset:{L_ST + 16 * i}")
        a.e(f"ds_read_b128 v[{VL_ + 4 * i}:{VL_ + 4 * i + 3}], v{V_T} offset:{L_ST + 64 + 16 * i}")
    a.e(f"v_and_b32 v{V_T + 1}, 31, v{V_L}")
    a.e(f"s_lshl_b32 s{S_T0}, s{S_W}, 5")
    a.e(f"v_add_u32 v{V_T + 1}, s{S_T0}, v{V_T + 1}")
    a.e(f"v_lshlrev_b32 v{V_T + 1}, 2, v{V_T + 1}")
    VA_ = V_XP
    for s_ in range(16):
        a.e(f"ds_read_b32 v{VA_ + s_}, v{V_T + 1} offset:{L_ACC + 512 * s_}")
    a.lgkm0()
    VG = V_big + 32
    a.e(f"v_max3_f32 v{VG}, v{VM_}, v{VM_ + 1}, v{VM_ + 2}")
    for i in range(3, 15, 2):
        a.e(f"v_max3_f32 v{VG}, v{VG}, v{VM_ + i}, v{VM_ + i + 1}")
    a.e(f"v_max_f32 v{VG}, v{VG}, v{VM_ + 15}")
    a.e(f"v_mul_f32 v{V_NML}, s{S_NLOG2E}, v{VG}")
    for i in range(16):
        a.e(f"v_fma_f32 v{VM_ + i}, v{VM_ + i}, s{S_LOG2E}, v{V_NML}")
    for i in range(16):
        a.e(f"v_exp_f32 v{VM_ + i}, v{VM_ + i}")
    a.nop(1)
    VLG = V_big + 33
    VO = V_T2 + 2
    a.e(f"v_mul_f32 v{VLG}, v{VM_}, v{VL_}")
    a.e(f"v_mul_f32 v{VO}, v{VM_}, v{VA_}")
    for i in range(1, 16):
        a.e(f"v_fmac_f32 v{VLG}, v{VM_ + i}, v{VL_ + i}")
        a.e(f"v_fmac_f32 v{VO}, v{VM_ + i}, v{VA_ + i}")
    a.nop(2)
    a.e(f"v_mov_b32_dpp v{V_T2 + 3}, v{VO} quad_perm:[1,0,3,2] row_mask:0xf bank_mask:0xf")
    a.e(f"v_cvt_pk_bf16_f32 v{V_T2 + 4}, v{VO}, v{V_T2 + 3}")
    a.nop(2)
    for i in range(16):
        a.e(f"v_readlane_b32 s{S_OP + i}, v{V_T2 + 4}, {2 * i}")
    for i in range(8):
        a.e(f"v_mov_b32 v{V_ACC + i}, 0")
    a.nop(4)
    a.c("out projection")
    for bt in range(4):
        a.wait_vm(f"wo{bt}")
        sl = slot(bt)
        for k in range(4):
            wrs_pairs(a, sl + 8 * k, sl + 8 * k + 4, [f"s{S_OP + 4 * bt + k}"], [V_ACC], V_T)
    a.nop(4)
    a.e(f"v_lshlrev_b32 v{V_T}, 5, v{V_L}")
    a.e(f"s_lshl_b32 s{S_T0}, s{S_W}, 11")
    a.e(f"v_add_u32 v{V_T}, s{S_T0}, v{V_T}")
    a.e(f"ds_write_b128 v{V_T}, v[{V_ACC}:{V_ACC + 3}] offset:{L_Y}")
    a.e(f"ds_write_b128 v{V_T}, v[{V_ACC + 4}:{V_ACC + 7}] offset:{L_Y + 16}")
    a.barrier()
    a.e(f"v_lshlrev_b32 v{V_T}, 3, v0")
    for w_ in range(4):
        a.e(f"ds_read_b64 v[{V_T2 + 2 * w_}:{V_T2 + 2 * w_ + 1}], v{V_T} offset:{L_Y + 2048 * w_}")
    a.lgkm0()
    for k in range(2):
        a.e(f"v_add_f32 v{V_T2 + k}, v{V_T2 + k}, v{V_T2 + 2 + k}")
        a.e(f"v_add_f32 v{V_T2 + 4 + k}, v{V_T2 + 4 + k}, v{V_T2 + 6 + k}")
    for k in range(2):
        a.e(f"v_add_f32 v{V_T2 + k}, v{V_T2 + k}, v{V_T2 + 4 + k}")
    a.e(f"s_lshl_b32 s{S_T0}, s{S_B}, 5")
    a.e(f"s_add_u32 s{S_T0}, s{S_T0}, s{S_H}")
    a.e(f"s_lshl_b32 s{S_T0}, s{S_T0}, 2")
    a.e(f"s_add_u32 s{S_T0}, s{S_T0}, s{S_S}")
    a.e(f"s_lshl_b32 s{S_T1}, s{S_T0}, 11")
    a.e(f"s_add_u32 s{S_T1}, s{S_T1}, 0x{WS_YA:x}")
    a.vm(f"buffer_store_dwordx2 v[{V_T2}:{V_T2 + 1}], v{V_T}, s[{SRD_WS}:{SRD_WS + 3}], s{S_T1} offen{sc}", "st")
    a.e(f"s_lshl_b32 s{S_T1}, s{S_T0}, 3")
    a.e(f"s_add_u32 s{S_T1}, s{S_T1}, 0x{WS_STA:x}")
    a.e(f"v_mov_b32 v{V_T2 + 4}, v{VG}")
    a.e(f"v_mov_b32 v{V_T2 + 5}, v{VLG}")
    a.e(f"v_mov_b32 v{V_T + 1}, 0")
    a.e(f"v_cmp_eq_u32 vcc, 0, v0")
    a.e(f"s_and_saveexec_b64 s[{S_EX}:{S_EX + 1}], vcc")
    a.vm(f"buffer_store_dwordx2 v[{V_T2 + 4}:{V_T2 + 5}], v{V_T + 1}, s[{SRD_WS}:{SRD_WS + 3}], s{S_T1} offen{sc}", "st")
    a.e(f"s_mov_b64 exec, s[{S_EX}:{S_EX + 1}]")
    a.wait_all_vm()
    if diag:
        stamp(a, 3, diag)
        dump_stamps(a, SRD_WS, S_WG, 4)
        a.wait_all_vm()
    a.e("s_endpgm")
```

```python
from gen_common import *
import gen_a
from gen_a import (S_SCALE, S_LOG2E, S_NLOG2E, S_SELLO, S_SELHI, V_L, V_R, V_CP, V_L16, V_RING,
                   wrs_pairs, round_scale4, slot, common_consts, lane_ids, S_W)

S_WG = 3
S_H, S_B, S_J = 4, 5, 6
S_T0, S_T1, S_T2 = 11, 12, 13
S_EX = 14
SRD_X, SRD_WQ, SRD_WUK, SRD_CKV, SRD_WUV, SRD_WS, SRD_WO = 44, 48, 52, 56, 60, 64, 80
S_O = 88

V_A0, V_A1, V_A2 = 5, 6, 7
V_ACC0, V_ACC1 = 8, 16
V_T = 24
V_T2 = 32
V_XP0, V_XP1 = 40, 56
V_XP0, V_XP1 = 192, 208
V_QF0, V_QF1 = 40, 44
V_V = 48
B_VGPRS = 232

B_LDS = 75264


def b_preamble(a):
    a.c("================ ROLE B preamble ================")
    lane_ids(a)
    common_consts(a)
    make_srd(a, SRD_X, P_BX, 2048)
    make_srd(a, SRD_WQ, P_BWQ, 0x400000)
    make_srd(a, SRD_WUK, P_BWUK, 0x400000)
    make_srd(a, SRD_CKV, P_BCKV, 0x800000)
    make_srd(a, SRD_WUV, P_BWUV, 0x400000)
    make_srd(a, SRD_WS, P_WS, WS_BYTES)
    make_srd(a, SRD_WO, P_BWO, 0x400000)


def hj_ids(a):
    a.e(f"s_lshr_b32 s{S_H}, s{S_WG}, 2")
    a.e(f"s_and_b32 s{S_J}, s{S_WG}, 3")


def sum_slots_store_lds_bf16(a, l_src, l_dst):
    a.e(f"v_and_b32 v{V_T}, 127, v0")
    a.e(f"v_lshrrev_b32 v{V_T + 1}, 7, v0")
    a.e(f"v_lshlrev_b32 v{V_T + 2}, 13, v{V_T + 1}")
    a.e(f"v_lshl_add_u32 v{V_T + 2}, v{V_T}, 2, v{V_T + 2}")
    for s_ in range(16):
        a.e(f"ds_read_b32 v{V_XP0 + s_}, v{V_T + 2} offset:{l_src + 512 * s_}")
    a.lgkm0()
    a.e(f"v_add_f32 v{V_T + 3}, v{V_XP0}, v{V_XP0 + 1}")
    for k in range(2, 16):
        a.e(f"v_add_f32 v{V_T + 3}, v{V_T + 3}, v{V_XP0 + k}")
    a.e(f"v_cvt_pk_bf16_f32 v{V_T + 3}, v{V_T + 3}, v{V_T + 3}")
    a.e(f"v_lshlrev_b32 v{V_T + 1}, 8, v{V_T + 1}")
    a.e(f"v_lshl_add_u32 v{V_T + 1}, v{V_T}, 1, v{V_T + 1}")
    a.e(f"ds_write_b16 v{V_T + 1}, v{V_T + 3} offset:{l_dst}")


def sum_slots_f32(a, l_src, vdst):
    a.e(f"v_and_b32 v{V_T}, 127, v0")
    a.e(f"v_lshrrev_b32 v{V_T + 1}, 7, v0")
    a.e(f"v_lshlrev_b32 v{V_T + 2}, 13, v{V_T + 1}")
    a.e(f"v_lshl_add_u32 v{V_T + 2}, v{V_T}, 2, v{V_T + 2}")
    for s_ in range(16):
        a.e(f"ds_read_b32 v{V_XP0 + s_}, v{V_T + 2} offset:{l_src + 512 * s_}")
    a.lgkm0()
    a.e(f"v_add_f32 v{vdst}, v{V_XP0}, v{V_XP0 + 1}")
    for k in range(2, 16):
        a.e(f"v_add_f32 v{vdst}, v{vdst}, v{V_XP0 + k}")


def write_slot_partials(a, l_dst):
    a.e(f"v_lshlrev_b32 v{V_T}, 2, v{V_R}")
    a.e(f"s_lshl_b32 s{S_T0}, s{S_W}, 4")
    a.e(f"v_add_u32 v{V_T}, s{S_T0}, v{V_T}")
    a.e(f"v_lshlrev_b32 v{V_T}, 7, v{V_T}")
    a.e(f"v_lshl_add_u32 v{V_T}, v{V_CP}, 5, v{V_T}")
    a.e(f"ds_write_b128 v{V_T}, v[{V_ACC0}:{V_ACC0 + 3}] offset:{l_dst}")
    a.e(f"ds_write_b128 v{V_T}, v[{V_ACC0 + 4}:{V_ACC0 + 7}] offset:{l_dst + 16}")
    a.e(f"ds_write_b128 v{V_T}, v[{V_ACC1}:{V_ACC1 + 3}] offset:{l_dst + 8192}")
    a.e(f"ds_write_b128 v{V_T}, v[{V_ACC1 + 4}:{V_ACC1 + 7}] offset:{l_dst + 8192 + 16}")


L1_Q1 = 0
L1_QB = 16384


def emit_b1(a, sc=""):
    a.c("---------------- B1 ----------------")
    hj_ids(a)
    a.e(f"v_lshlrev_b32 v{V_A0}, 6, v{V_R}")
    a.e(f"s_lshl_b32 s{S_T0}, s{S_W}, 8")
    a.e(f"s_add_u32 s{S_T1}, s{S_T0}, 1024")
    for b, (xp, so) in enumerate(((V_XP0, S_T0), (V_XP1, S_T1))):
        for i in range(4):
            a.vm(f"buffer_load_dwordx4 v[{xp + 4 * i}:{xp + 4 * i + 3}], v{V_A0}, s[{SRD_X}:{SRD_X + 3}], s{so} offen offset:{16 * i}", "x")
    a.e(f"v_lshlrev_b32 v{V_A1}, 18, v{V_R}")
    a.e(f"v_lshl_add_u32 v{V_A1}, v{V_CP}, 4, v{V_A1}")
    a.e(f"s_lshl_b32 s{S_T0}, s{S_W}, 20")
    a.e(f"s_lshl_b32 s{S_T1}, s{S_H}, 8")
    a.e(f"s_add_u32 s{S_O}, s{S_T0}, s{S_T1}")
    for jl in range(32):
        r0 = V_RING + 4 * jl
        a.vm(f"buffer_load_dwordx4 v[{r0}:{r0 + 3}], v{V_A1}, s[{SRD_WQ}:{SRD_WQ + 3}], s{S_O} offen", f"wq{jl // 8}")
        a.e(f"s_add_u32 s{S_O}, s{S_O}, 8192")
    for i in range(8):
        a.e(f"v_mov_b32 v{V_ACC0 + i}, 0")
        a.e(f"v_mov_b32 v{V_ACC1 + i}, 0")
    a.e(f"v_lshlrev_b32 v{V_A2}, 13, v{V_R}")
    a.e(f"v_lshl_add_u32 v{V_A2}, v{V_CP}, 4, v{V_A2}")
    a.e(f"s_lshl_b32 s{S_T0}, s{S_J}, 20")
    a.e(f"s_lshl_b32 s{S_T1}, s{S_W}, 18")
    a.e(f"s_add_u32 s{S_T0}, s{S_T0}, s{S_T1}")
    a.e(f"s_lshl_b32 s{S_T1}, s{S_H}, 8")
    a.e(f"s_add_u32 s{S_O + 1}, s{S_T0}, s{S_T1}")
    a.wait_vm("x")
    for bt in range(4):
        a.wait_vm(f"wq{bt}")
        for i in range(4):
            jl = 8 * bt + 2 * i
            wrs_pairs(a, V_RING + 4 * jl, V_RING + 4 * (jl + 1),
                      [f"v{V_XP0 + jl // 2}", f"v{V_XP1 + jl // 2}"], [V_ACC0, V_ACC1], V_T)
        if bt == 0:
            for jl in range(8):
                r0 = V_RING + 4 * jl
                a.vm(f"buffer_load_dwordx4 v[{r0}:{r0 + 3}], v{V_A2}, s[{SRD_WUK}:{SRD_WUK + 3}], s{S_O + 1} offen", "wuk")
                a.e(f"s_add_u32 s{S_O + 1}, s{S_O + 1}, 32768")
    a.nop(4)
    write_slot_partials(a, L1_Q1)
    a.barrier()
    sum_slots_store_lds_bf16(a, L1_Q1, L1_QB)
    a.barrier()
    a.e(f"v_lshlrev_b32 v{V_T}, 4, v{V_CP}")
    a.e(f"ds_read_b128 v[{V_QF0}:{V_QF0 + 3}], v{V_T} offset:{L1_QB}")
    a.e(f"ds_read_b128 v[{V_QF1}:{V_QF1 + 3}], v{V_T} offset:{L1_QB + 256}")
    a.lgkm0()
    a.wait_vm("wuk")
    for jp in range(4):
        chains = [(2 * jp + dj, b) for dj in range(2) for b in range(2)]
        for i in range(4):
            for (jl, b) in chains:
                d = V_V + 2 * jl + b
                qf = (V_QF0, V_QF1)[b]
                src2 = "0" if i == 0 else f"v{d}"
                a.e(f"v_dot2_f32_bf16 v{d}, v{V_RING + 4 * jl + i}, v{qf + i}, {src2}")
        for step in (8, 4, 2, 1):
            for (jl, b) in chains:
                d = V_V + 2 * jl + b
                a.e(f"v_add_f32_dpp v{d}, v{d}, v{d} row_ror:{step} row_mask:0xf bank_mask:0xf")
    a.e(f"s_lshr_b32 s{S_T0}, s{S_H}, 4")
    a.e(f"s_lshl_b32 s{S_T0}, s{S_T0}, 14")
    a.e(f"s_lshl_b32 s{S_T1}, s{S_J}, 2")
    a.e(f"s_add_u32 s{S_T1}, s{S_T1}, s{S_W}")
    a.e(f"s_lshl_b32 s{S_T1}, s{S_T1}, 10")
    a.e(f"s_add_u32 s{S_T0}, s{S_T0}, s{S_T1}")
    a.e(f"s_and_b32 s{S_T1}, s{S_H}, 15")
    a.e(f"s_lshl_b32 s{S_T1}, s{S_T1}, 4")
    a.e(f"s_add_u32 s{S_T0}, s{S_T0}, s{S_T1}")
    a.e(f"s_add_u32 s{S_O + 2}, s{S_T0}, 0x{WS_QC:x}")
    a.e(f"s_add_u32 s{S_O + 3}, s{S_T0}, 0x{WS_QC + 32768:x}")
    a.e(f"s_add_u32 s{S_O + 4}, s{S_T0}, 0x{WS_QC + 65536:x}")
    a.e(f"s_add_u32 s{S_O + 5}, s{S_T0}, 0x{WS_QC + 98304:x}")
    a.e(f"v_lshlrev_b32 v{V_A0}, 1, v{V_R}")
    a.e(f"v_cmp_eq_u32 vcc, 0, v{V_CP}")
    a.e(f"s_and_saveexec_b64 s[{S_EX}:{S_EX + 1}], vcc")
    for jl in range(8):
        for b in range(2):
            d = V_V + 2 * jl + b
            imm = (jl >> 1) * 256 + 8 * (jl & 1)
            a.e(f"v_cvt_pk_bf16_f32 v{V_T}, v{d}, v{d}")
            a.e(f"v_lshlrev_b32 v{V_T + 1}, 16, v{V_T}")
            a.e(f"v_sub_f32 v{V_T + 1}, v{d}, v{V_T + 1}")
            a.e(f"v_cvt_pk_bf16_f32 v{V_T + 1}, v{V_T + 1}, v{V_T + 1}")
            a.vm(f"buffer_store_short v{V_T}, v{V_A0}, s[{SRD_WS}:{SRD_WS + 3}], s{S_O + 2 + 2 * b} offen offset:{imm}{sc}", "qcst")
            a.vm(f"buffer_store_short v{V_T + 1}, v{V_A0}, s[{SRD_WS}:{SRD_WS + 3}], s{S_O + 3 + 2 * b} offen offset:{imm}{sc}", "qcst")
            a.nop(1)
    a.e(f"s_mov_b64 exec, s[{S_EX}:{S_EX + 1}]")


L2_P = 0
L2_MX = 4608
L2_LS = 6656
L2_T = 8704
RS = 1040


def emit_b2_prefetch(a):
    a.c("---------------- B2 prefetch ----------------")
    a.e(f"s_lshr_b32 s{S_B}, s{S_WG}, 6")
    a.e(f"s_and_b32 s{S_J}, s{S_WG}, 63")
    a.e(f"s_lshl_b32 s{S_T0}, s{S_B}, 12")
    a.e(f"s_lshl_b32 s{S_T1}, s{S_J}, 6")
    a.e(f"s_add_u32 s{S_T0}, s{S_T0}, s{S_T1}")
    a.e(f"s_lshl_b32 s{S_T1}, s{S_W}, 4")
    a.e(f"s_add_u32 s{S_T0}, s{S_T0}, s{S_T1}")
    a.e(f"s_lshl_b32 s{S_O}, s{S_T0}, 10")
    for i in range(16):
        r0 = V_RING + 4 * i
        a.vm(f"buffer_load_dwordx4 v[{r0}:{r0 + 3}], v{V_L16}, s[{SRD_CKV}:{SRD_CKV + 3}], s{S_O} offen offset:{1024 * (i % 4)}", "ckv")
        if i % 4 == 3:
            a.e(f"s_add_u32 s{S_O}, s{S_O}, 4096")


def emit_b2_main(a, sc=""):
    a.c("---------------- B2 main ----------------")
    a.e(f"s_mul_i32 s{S_T0}, s{S_W}, {16 * RS}")
    a.e(f"v_add_u32 v{V_A0}, s{S_T0}, v{V_L16}")
    a.wait_vm("ckv")
    for i in range(16):
        a.e(f"ds_write_b128 v{V_A0}, v[{V_RING + 4 * i}:{V_RING + 4 * i + 3}] offset:{L2_T + RS * i}")
    a.e(f"s_lshl_b32 s{S_T0}, s{S_B}, 16")
    for k in range(4):
        a.e(f"s_add_u32 s{S_O + 1 + k}, s{S_T0}, 0x{WS_QC + 16384 * k:x}")

    def issue_qc(kp):
        sl = slot(kp % 4)
        for dk in range(2):
            for k in range(4):
                r0 = sl + 16 * dk + 4 * k
                a.vm(f"buffer_load_dwordx4 v[{r0}:{r0 + 3}], v{V_L16}, s[{SRD_WS}:{SRD_WS + 3}], s{S_O + 1 + k} offen offset:{1024 * dk}{sc}", f"qc{kp}")
        for k in range(4):
            a.e(f"s_add_u32 s{S_O + 1 + k}, s{S_O + 1 + k}, 2048")

    a.lgkm0()
    for kp in range(4):
        issue_qc(kp)
    a.barrier()
    a.e(f"v_mul_u32_u24 v{V_A1}, {RS}, v{V_CP}")
    a.e(f"v_lshl_add_u32 v{V_A1}, v{V_R}, 4, v{V_A1}")
    a.e(f"s_mul_i32 s{S_T0}, s{S_W}, {16 * RS}")
    a.e(f"v_add_u32 v{V_A1}, s{S_T0}, v{V_A1}")
    SA = V_V
    for i in range(8):
        a.e(f"v_mov_b32 v{SA + i}, 0")
    AF = V_T
    for kp in range(8):
        sl = slot(kp % 4)
        a.e(f"ds_read_b128 v[{AF}:{AF + 3}], v{V_A1} offset:{L2_T + 64 * (2 * kp)}")
        a.e(f"ds_read_b128 v[{AF + 4}:{AF + 7}], v{V_A1} offset:{L2_T + 64 * (2 * kp + 1)}")
        a.wait_vm(f"qc{kp}")
        a.lgkm0()
        for dk in range(2):
            for k in range(4):
                hg = k & 1
                r0 = sl + 16 * dk + 4 * k
                a.e(f"v_mfma_f32_16x16x32_bf16 v[{SA + 4 * hg}:{SA + 4 * hg + 3}], v[{AF + 4 * dk}:{AF + 4 * dk + 3}], v[{r0}:{r0 + 3}], v[{SA + 4 * hg}:{SA + 4 * hg + 3}]")
        if kp + 4 < 8:
            issue_qc(kp + 4)
    a.nop(10)
    U = V_V + 8
    round_scale4(a, SA, U, V_T)
    round_scale4(a, SA + 4, U + 4, V_T)
    a.e(f"v_lshlrev_b32 v{V_A0}, 6, v{V_CP}")
    a.e(f"v_lshl_add_u32 v{V_A2}, v{V_R}, 2, v{V_A0}")
    a.e(f"s_lshl_b32 s{S_T0}, s{S_W}, 4")
    a.e(f"v_add_u32 v{V_A2}, s{S_T0}, v{V_A2}")
    for hg in range(2):
        a.e(f"v_max3_f32 v{V_T + hg}, v{U + 4 * hg}, v{U + 4 * hg + 1}, v{U + 4 * hg + 2}")
        a.e(f"v_max_f32 v{V_T + hg}, v{V_T + hg}, v{U + 4 * hg + 3}")
    for hg in range(2):
        a.e(f"ds_write_b32 v{V_A2}, v{V_T + hg} offset:{L2_MX + 1024 * hg}")
    a.barrier()
    MXR = V_XP0
    for hg in range(2):
        for k in range(4):
            a.e(f"ds_read_b128 v[{MXR + 16 * hg + 4 * k}:{MXR + 16 * hg + 4 * k + 3}], v{V_A0} offset:{L2_MX + 1024 * hg + 16 * k}")
    a.lgkm0()
    for hg in range(2):
        b0 = MXR + 16 * hg
        a.e(f"v_max3_f32 v{V_T2 + hg}, v{b0}, v{b0 + 1}, v{b0 + 2}")
        for i in range(3, 15, 2):
            a.e(f"v_max3_f32 v{V_T2 + hg}, v{V_T2 + hg}, v{b0 + i}, v{b0 + i + 1}")
        a.e(f"v_max_f32 v{V_T2 + hg}, v{V_T2 + hg}, v{b0 + 15}")
    for hg in range(2):
        a.e(f"v_mul_f32 v{V_T2 + 2 + hg}, s{S_NLOG2E}, v{V_T2 + hg}")
    for hg in range(2):
        for i in range(4):
            a.e(f"v_fma_f32 v{U + 4 * hg + i}, v{U + 4 * hg + i}, s{S_LOG2E}, v{V_T2 + 2 + hg}")
    for i in range(8):
        a.e(f"v_exp_f32 v{U + i}, v{U + i}")
    a.nop(1)
    for hg in range(2):
        a.e(f"v_add_f32 v{V_T + hg}, v{U + 4 * hg}, v{U + 4 * hg + 1}")
        a.e(f"v_add_f32 v{V_T + 2 + hg}, v{U + 4 * hg + 2}, v{U + 4 * hg + 3}")
    for hg in range(2):
        a.e(f"v_add_f32 v{V_T + hg}, v{V_T + hg}, v{V_T + 2 + hg}")
    for hg in range(2):
        a.e(f"ds_write_b32 v{V_A2}, v{V_T + hg} offset:{L2_LS + 1024 * hg}")
    a.e(f"v_mul_u32_u24 v{V_A2}, 144, v{V_CP}")
    a.e(f"v_lshl_add_u32 v{V_T + 4}, v{V_R}, 3, v{V_A2}")
    a.e(f"s_lshl_b32 s{S_T0}, s{S_W}, 5")
    a.e(f"v_add_u32 v{V_T + 4}, s{S_T0}, v{V_T + 4}")
    for hg in range(2):
        a.e(f"v_cvt_pk_bf16_f32 v{V_T + 6}, v{U + 4 * hg}, v{U + 4 * hg + 1}")
        a.e(f"v_cvt_pk_bf16_f32 v{V_T + 7}, v{U + 4 * hg + 2}, v{U + 4 * hg + 3}")
        a.e(f"ds_write_b64 v{V_T + 4}, v[{V_T + 6}:{V_T + 7}] offset:{L2_P + 2304 * hg}")
    a.barrier()
    a.e(f"s_cmp_eq_u32 s{S_W}, 0")
    a.e(f"s_cbranch_scc0 B2_nostats")
    a.e(f"v_and_b32 v{V_T}, 31, v{V_L}")
    a.e(f"v_lshlrev_b32 v{V_T + 1}, 6, v{V_T}")
    for k in range(4):
        a.e(f"ds_read_b128 v[{MXR + 4 * k}:{MXR + 4 * k + 3}], v{V_T + 1} offset:{L2_MX + 16 * k}")
        a.e(f"ds_read_b128 v[{MXR + 16 + 4 * k}:{MXR + 16 + 4 * k + 3}], v{V_T + 1} offset:{L2_LS + 16 * k}")
    a.lgkm0()
    a.e(f"v_max3_f32 v{V_T + 2}, v{MXR}, v{MXR + 1}, v{MXR + 2}")
    for i in range(3, 15, 2):
        a.e(f"v_max3_f32 v{V_T + 2}, v{V_T + 2}, v{MXR + i}, v{MXR + i + 1}")
    a.e(f"v_max_f32 v{V_T + 2}, v{V_T + 2}, v{MXR + 15}")
    a.e(f"v_add_f32 v{V_T + 3}, v{MXR + 16}, v{MXR + 17}")
    for i in range(2, 16):
        a.e(f"v_add_f32 v{V_T + 3}, v{V_T + 3}, v{MXR + 16 + i}")
    a.e(f"s_lshl_b32 s{S_T0}, s{S_B}, 6")
    a.e(f"s_add_u32 s{S_T0}, s{S_T0}, s{S_J}")
    a.e(f"s_lshl_b32 s{S_T0}, s{S_T0}, 8")
    a.e(f"s_add_u32 s{S_T0}, s{S_T0}, 0x{WS_STB:x}")
    a.e(f"v_lshlrev_b32 v{V_T + 1}, 3, v{V_T}")
    a.vm(f"buffer_store_dwordx2 v[{V_T + 2}:{V_T + 3}], v{V_T + 1}, s[{SRD_WS}:{SRD_WS + 3}], s{S_T0} offen{sc}", "stb")
    a.lbl("B2_nostats")
    a.c("PV")
    PA = V_XP0
    a.e(f"v_mul_u32_u24 v{V_A2}, 144, v{V_CP}")
    a.e(f"v_lshl_add_u32 v{V_A2}, v{V_R}, 4, v{V_A2}")
    for hg in range(2):
        for kk2 in range(2):
            r0 = PA + 8 * hg + 4 * kk2
            a.e(f"ds_read_b128 v[{r0}:{r0 + 3}], v{V_A2} offset:{L2_P + 2304 * hg + 64 * kk2}")
    a.e(f"v_lshrrev_b32 v{V_T}, 2, v{V_CP}")
    a.e(f"v_lshl_add_u32 v{V_T}, v{V_R}, 3, v{V_T}")
    a.e(f"v_mul_u32_u24 v{V_T}, {RS}, v{V_T}")
    a.e(f"v_and_b32 v{V_T + 1}, 3, v{V_CP}")
    a.e(f"v_lshl_add_u32 v{V_T}, v{V_T + 1}, 3, v{V_T}")
    a.e(f"s_lshl_b32 s{S_T0}, s{S_W}, 8")
    a.e(f"v_add_u32 v{V_A2}, s{S_T0}, v{V_T}")
    ACC = V_RING
    for i in range(64):
        a.e(f"v_mov_b32 v{ACC + i}, 0")
    BF = V_RING + 64
    for kk2 in range(2):
        for ct in range(8):
            off = L2_T + kk2 * 32 * RS + ct * 32
            a.e(f"ds_read_b64_tr_b16 v[{BF + 4 * ct}:{BF + 4 * ct + 1}], v{V_A2} offset:{off}")
            a.e(f"ds_read_b64_tr_b16 v[{BF + 4 * ct + 2}:{BF + 4 * ct + 3}], v{V_A2} offset:{off + 4 * RS}")
        a.lgkm0()
        for ct in range(8):
            for hg in range(2):
                d = ACC + 8 * ct + 4 * hg
                pa = PA + 8 * hg + 4 * kk2
                a.e(f"v_mfma_f32_16x16x32_bf16 v[{d}:{d + 3}], v[{pa}:{pa + 3}], v[{BF + 4 * ct}:{BF + 4 * ct + 3}], v[{d}:{d + 3}]")
        a.nop(8)
    a.nop(4)
    a.e(f"v_lshlrev_b32 v{V_A0}, 13, v{V_R}")
    a.e(f"v_lshl_add_u32 v{V_A0}, v{V_CP}, 2, v{V_A0}")
    a.e(f"s_lshl_b32 s{S_T0}, s{S_B}, 6")
    a.e(f"s_add_u32 s{S_T0}, s{S_T0}, s{S_J}")
    a.e(f"s_lshl_b32 s{S_T0}, s{S_T0}, 16")
    a.e(f"s_add_u32 s{S_T0}, s{S_T0}, 0x{WS_PART:x}")
    a.e(f"s_lshl_b32 s{S_T1}, s{S_W}, 9")
    a.e(f"s_add_u32 s{S_T0}, s{S_T0}, s{S_T1}")
    for hg in range(2):
        for i in range(4):
            a.e(f"s_add_u32 s{S_O + 4 * hg + i}, s{S_T0}, {(16 * hg + i) * 2048}")
    for ct in range(8):
        for hg in range(2):
            for i in range(4):
                a.vm(f"buffer_store_dword v{ACC + 8 * ct + 4 * hg + i}, v{V_A0}, s[{SRD_WS}:{SRD_WS + 3}], s{S_O + 4 * hg + i} offen offset:{64 * ct}{sc}", "part")


L3_CC = 0
L3_R2 = 4096


def wave_allreduce(a, v, t, op):
    ins = "v_max_f32" if op == "max" else "v_add_f32"
    a.nop(2)
    for step in (8, 4, 2, 1):
        a.e(f"{ins}_dpp v{v}, v{v}, v{v} row_ror:{step} row_mask:0xf bank_mask:0xf")
        a.nop(2)
    a.e(f"v_mov_b32 v{t}, v{v}")
    a.nop(2)
    a.e(f"v_permlane16_swap_b32 v{v}, v{t}")
    a.e(f"{ins} v{v}, v{v}, v{t}")
    a.e(f"v_mov_b32 v{t}, v{v}")
    a.nop(2)
    a.e(f"v_permlane32_swap_b32 v{v}, v{t}")
    a.e(f"{ins} v{v}, v{v}, v{t}")


def emit_b3a_prefetch(a):
    a.c("---------------- B3a prefetch ----------------")
    hj_ids(a)
    a.e(f"v_lshlrev_b32 v{V_A2}, 16, v{V_R}")
    a.e(f"v_lshl_add_u32 v{V_A2}, v{V_CP}, 4, v{V_A2}")
    a.e(f"s_lshl_b32 s{S_T0}, s{S_J}, 20")
    a.e(f"s_lshl_b32 s{S_T1}, s{S_W}, 18")
    a.e(f"s_add_u32 s{S_T0}, s{S_T0}, s{S_T1}")
    a.e(f"s_lshl_b32 s{S_T1}, s{S_H}, 8")
    a.e(f"s_add_u32 s{S_O}, s{S_T0}, s{S_T1}")
    for jl in range(8):
        r0 = V_RING + 96 + 4 * jl
        a.vm(f"buffer_load_dwordx4 v[{r0}:{r0 + 3}], v{V_A2}, s[{SRD_WUV}:{SRD_WUV + 3}], s{S_O} offen", "wuv")
        a.e(f"s_add_u32 s{S_O}, s{S_O}, 8192")


def emit_b3a_main(a, sc=""):
    a.c("---------------- B3a main ----------------")
    a.e(f"v_lshlrev_b32 v{V_A0}, 8, v{V_L}")
    a.e(f"s_lshl_b32 s{S_T0}, s{S_H}, 3")
    a.e(f"s_add_u32 s{S_T0}, s{S_T0}, 0x{WS_STB:x}")
    a.e(f"s_add_u32 s{S_T1}, s{S_T0}, 16384")
    a.vm(f"buffer_load_dwordx2 v[{V_T}:{V_T + 1}], v{V_A0}, s[{SRD_WS}:{SRD_WS + 3}], s{S_T0} offen{sc}", "st")
    a.vm(f"buffer_load_dwordx2 v[{V_T + 2}:{V_T + 3}], v{V_A0}, s[{SRD_WS}:{SRD_WS + 3}], s{S_T1} offen{sc}", "st")
    a.e(f"v_lshlrev_b32 v{V_A1}, 3, v{V_L}")
    a.e(f"s_lshl_b32 s{S_T0}, s{S_W}, 20")
    a.e(f"s_lshl_b32 s{S_T1}, s{S_H}, 11")
    a.e(f"s_add_u32 s{S_T0}, s{S_T0}, s{S_T1}")
    a.e(f"s_lshl_b32 s{S_T1}, s{S_J}, 9")
    a.e(f"s_add_u32 s{S_T0}, s{S_T0}, s{S_T1}")
    a.e(f"s_add_u32 s{S_O + 1}, s{S_T0}, 0x{WS_PART:x}")
    a.e(f"s_add_u32 s{S_O + 2}, s{S_T0}, 0x{WS_PART + 64 * 65536:x}")
    for b in range(2):
        for c in range(16):
            r0 = V_RING + 32 * b + 2 * c
            a.vm(f"buffer_load_dwordx2 v[{r0}:{r0 + 1}], v{V_A1}, s[{SRD_WS}:{SRD_WS + 3}], s{S_O + 1 + b} offen{sc}", f"part{b}")
            a.e(f"s_add_u32 s{S_O + 1 + b}, s{S_O + 1 + b}, 65536")
    a.wait_vm("st")
    CO = V_T + 4
    for b in range(2):
        m_, l_ = V_T + 2 * b, V_T + 2 * b + 1
        a.e(f"v_mov_b32 v{V_T2}, v{m_}")
        wave_allreduce(a, V_T2, V_T2 + 1, "max")
        a.e(f"v_sub_f32 v{V_T2}, v{m_}, v{V_T2}")
        a.e(f"v_mul_f32 v{V_T2}, s{S_LOG2E}, v{V_T2}")
        a.e(f"v_exp_f32 v{CO + b}, v{V_T2}")
        a.nop(1)
        a.e(f"v_mul_f32 v{V_T2}, v{CO + b}, v{l_}")
        wave_allreduce(a, V_T2, V_T2 + 1, "add")
        a.e(f"v_rcp_f32 v{V_T2}, v{V_T2}")
        a.nop(1)
        a.e(f"v_mul_f32 v{CO + b}, v{CO + b}, v{V_T2}")
    a.nop(2)
    for b in range(2):
        a.e(f"v_mov_b32 v{V_ACC0 + 2 * b}, 0")
        a.e(f"v_mov_b32 v{V_ACC0 + 2 * b + 1}, 0")
    a.e(f"s_lshl_b32 s{S_T2}, s{S_W}, 4")
    for b in range(2):
        a.wait_vm(f"part{b}")
        for c in range(16):
            a.e(f"s_add_u32 s{S_T0}, s{S_T2}, {c}")
            a.e(f"v_readlane_b32 s{S_T1}, v{CO + b}, s{S_T0}")
            a.nop(2)
            r0 = V_RING + 32 * b + 2 * c
            a.e(f"v_fmac_f32 v{V_ACC0 + 2 * b}, s{S_T1}, v{r0}")
            a.e(f"v_fmac_f32 v{V_ACC0 + 2 * b + 1}, s{S_T1}, v{r0 + 1}")
    a.e(f"s_lshl_b32 s{S_T0}, s{S_W}, 10")
    a.e(f"v_add_u32 v{V_A0}, s{S_T0}, v{V_A1}")
    a.e(f"ds_write_b64 v{V_A0}, v[{V_ACC0}:{V_ACC0 + 1}] offset:{L3_CC}")
    a.e(f"ds_write_b64 v{V_A0}, v[{V_ACC0 + 2}:{V_ACC0 + 3}] offset:{L3_CC + 512}")
    a.barrier()
    a.e(f"v_lshlrev_b32 v{V_A0}, 5, v{V_R}")
    a.e(f"s_lshl_b32 s{S_T0}, s{S_W}, 7")
    a.e(f"v_add_u32 v{V_A0}, s{S_T0}, v{V_A0}")
    WW = V_RING
    for w_ in range(4):
        for b in range(2):
            for k in range(2):
                r0 = WW + 16 * w_ + 8 * b + 4 * k
                a.e(f"ds_read_b128 v[{r0}:{r0 + 3}], v{V_A0} offset:{L3_CC + 1024 * w_ + 512 * b + 16 * k}")
    a.lgkm0()
    for i in range(16):
        a.e(f"v_add_f32 v{WW + i}, v{WW + i}, v{WW + 16 + i}")
        a.e(f"v_add_f32 v{WW + 32 + i}, v{WW + 32 + i}, v{WW + 48 + i}")
    for i in range(16):
        a.e(f"v_add_f32 v{WW + i}, v{WW + i}, v{WW + 32 + i}")
    for i in range(8):
        a.e(f"v_mov_b32 v{V_ACC0 + i}, 0")
        a.e(f"v_mov_b32 v{V_ACC1 + i}, 0")
    a.wait_vm("wuv")
    for jl in range(8):
        r0 = V_RING + 96 + 4 * jl
        for k in range(4):
            a.e(f"v_lshlrev_b32 v{V_T + k}, 16, v{r0 + k}")
            a.e(f"v_and_b32 v{V_T + 4 + k}, 0xffff0000, v{r0 + k}")
        for b in range(2):
            acc = (V_ACC0, V_ACC1)[b]
            for k in range(4):
                a.e(f"v_fmac_f32 v{acc + 2 * k}, v{WW + 8 * b + jl}, v{V_T + k}")
                a.e(f"v_fmac_f32 v{acc + 2 * k + 1}, v{WW + 8 * b + jl}, v{V_T + 4 + k}")
    write_slot_partials(a, L3_R2)
    a.barrier()
    sum_slots_f32(a, L3_R2, V_T + 4)
    a.e(f"v_lshrrev_b32 v{V_T + 5}, 7, v0")
    a.e(f"v_lshlrev_b32 v{V_T + 5}, 16, v{V_T + 5}")
    a.e(f"v_and_b32 v{V_T + 6}, 127, v0")
    a.e(f"v_lshl_add_u32 v{V_T + 5}, v{V_T + 6}, 2, v{V_T + 5}")
    a.e(f"s_lshl_b32 s{S_T0}, s{S_H}, 11")
    a.e(f"s_lshl_b32 s{S_T1}, s{S_J}, 9")
    a.e(f"s_add_u32 s{S_T0}, s{S_T0}, s{S_T1}")
    a.e(f"s_add_u32 s{S_T0}, s{S_T0}, 0x{WS_CTXP:x}")
    a.vm(f"buffer_store_dword v{V_T + 4}, v{V_T + 5}, s[{SRD_WS}:{SRD_WS + 3}], s{S_T0} offen{sc}", "ctxp")


def emit_b3b_prefetch(a):
    a.c("---------------- B3b prefetch ----------------")
    hj_ids(a)
    a.e(f"v_lshlrev_b32 v{V_A2}, 13, v{V_R}")
    a.e(f"v_lshl_add_u32 v{V_A2}, v{V_CP}, 4, v{V_A2}")
    a.e(f"s_lshl_b32 s{S_T0}, s{S_H}, 17")
    a.e(f"s_lshl_b32 s{S_T1}, s{S_W}, 15")
    a.e(f"s_add_u32 s{S_T0}, s{S_T0}, s{S_T1}")
    a.e(f"s_lshl_b32 s{S_T1}, s{S_J}, 8")
    a.e(f"s_add_u32 s{S_O}, s{S_T0}, s{S_T1}")
    for jl in range(8):
        r0 = V_RING + 96 + 4 * jl
        a.vm(f"buffer_load_dwordx4 v[{r0}:{r0 + 3}], v{V_A2}, s[{SRD_WO}:{SRD_WO + 3}], s{S_O} offen offset:{1024 * (jl % 4)}", "wo")
        if jl % 4 == 3:
            a.e(f"s_add_u32 s{S_O}, s{S_O}, 4096")


def emit_b3b_main(a, sc=""):
    a.c("---------------- B3b main ----------------")
    a.e(f"v_lshlrev_b32 v{V_A0}, 5, v{V_R}")
    a.e(f"s_lshl_b32 s{S_T0}, s{S_H}, 11")
    a.e(f"s_lshl_b32 s{S_T1}, s{S_W}, 7")
    a.e(f"s_add_u32 s{S_T0}, s{S_T0}, s{S_T1}")
    a.e(f"s_add_u32 s{S_O + 1}, s{S_T0}, 0x{WS_CTXP:x}")
    a.e(f"s_add_u32 s{S_O + 2}, s{S_T0}, 0x{WS_CTXP + 65536:x}")
    WW = V_RING
    for b in range(2):
        for jj in range(4):
            for k in range(2):
                r0 = WW + 32 * b + 8 * jj + 4 * k
                a.vm(f"buffer_load_dwordx4 v[{r0}:{r0 + 3}], v{V_A0}, s[{SRD_WS}:{SRD_WS + 3}], s{S_O + 1 + b} offen offset:{512 * jj + 16 * k}{sc}", "ctx")
    a.wait_vm("ctx")
    for b in range(2):
        base = WW + 32 * b
        for i in range(8):
            a.e(f"v_add_f32 v{base + i}, v{base + i}, v{base + 8 + i}")
            a.e(f"v_add_f32 v{base + 16 + i}, v{base + 16 + i}, v{base + 24 + i}")
        for i in range(8):
            a.e(f"v_add_f32 v{base + i}, v{base + i}, v{base + 16 + i}")
        for i in range(4):
            a.e(f"v_cvt_pk_bf16_f32 v{base + 8 + i}, v{base + 2 * i}, v{base + 2 * i + 1}")
    for i in range(8):
        a.e(f"v_mov_b32 v{V_ACC0 + i}, 0")
        a.e(f"v_mov_b32 v{V_ACC1 + i}, 0")
    a.wait_vm("wo")
    for k in range(4):
        r0 = V_RING + 96 + 8 * k
        wrs_pairs(a, r0, r0 + 4, [f"v{WW + 8 + k}", f"v{WW + 32 + 8 + k}"], [V_ACC0, V_ACC1], V_T)
    a.nop(4)
    write_slot_partials(a, L3_R2)
    a.barrier()
    sum_slots_f32(a, L3_R2, V_T + 4)
    a.e(f"v_lshrrev_b32 v{V_T + 5}, 7, v0")
    a.e(f"v_lshlrev_b32 v{V_T + 5}, 16, v{V_T + 5}")
    a.e(f"v_and_b32 v{V_T + 6}, 127, v0")
    a.e(f"v_lshl_add_u32 v{V_T + 5}, v{V_T + 6}, 2, v{V_T + 5}")
    a.e(f"s_lshl_b32 s{S_T0}, s{S_H}, 11")
    a.e(f"s_lshl_b32 s{S_T1}, s{S_J}, 9")
    a.e(f"s_add_u32 s{S_T0}, s{S_T0}, s{S_T1}")
    a.e(f"s_add_u32 s{S_T0}, s{S_T0}, 0x{WS_YB:x}")
    a.vm(f"buffer_store_dword v{V_T + 4}, v{V_T + 5}, s[{SRD_WS}:{SRD_WS + 3}], s{S_T0} offen{sc}", "yb")
```

```python
import struct


def f32bits(x):
    return struct.unpack("<I", struct.pack("<f", x))[0]


class Asm:
    def __init__(self):
        self.L = []
        self.vq = []

    def e(self, x):
        self.L.append("    " + x)

    def c(self, x):
        self.L.append("    ; " + x)

    def lbl(self, x):
        self.L.append(x + ":")

    def raw(self, x):
        self.L.append(x)

    def vm(self, x, tag):
        self.e(x)
        self.vq.append(tag)

    def wait_vm(self, tag):
        idxs = [i for i, t in enumerate(self.vq) if t == tag]
        if not idxs:
            return
        idx = max(idxs)
        n = len(self.vq) - 1 - idx
        assert n <= 63, n
        self.e(f"s_waitcnt vmcnt({n})")
        self.vq = self.vq[idx + 1:]

    def wait_all_vm(self):
        self.e("s_waitcnt vmcnt(0)")
        self.vq = []

    def lgkm0(self):
        self.e("s_waitcnt lgkmcnt(0)")

    def nop(self, n):
        while n > 0:
            k = min(n, 16)
            self.e(f"s_nop {k - 1}")
            n -= k

    def barrier(self):
        self.e("s_waitcnt lgkmcnt(0)")
        self.e("s_barrier")

    def text(self):
        return "\n".join(self.L) + "\n"


def vr(a, n=1):
    return f"v{a}" if n == 1 else f"v[{a}:{a + n - 1}]"


def sr(a, n=1):
    return f"s{a}" if n == 1 else f"s[{a}:{a + n - 1}]"


P_AX, P_AK, P_AV, P_AWQ, P_AWO, P_BX, P_BCKV, P_BWQ, P_BWUK, P_BWUV, P_BWO, P_OUT, P_DBG, P_WS = [
    16 + 2 * i for i in range(14)
]

WS_YA = 0x000000
WS_STA = 0x080000
WS_QC = 0x100000
WS_STB = 0x200000
WS_CTXP = 0x300000
WS_YB = 0x400000
WS_PART = 0x1000000
WS_BYTES = 0x10000000

SCALE = f32bits(128 ** -0.5)
LOG2E = f32bits(1.4426950408889634)
NEGLOG2E = f32bits(-1.4426950408889634)


def load_kernargs(a):
    a.e("s_load_dwordx16 s[16:31], s[0:1], 0")
    a.e("s_load_dwordx8 s[32:39], s[0:1], 64")
    a.e("s_load_dwordx4 s[40:43], s[0:1], 96")
    a.e("s_waitcnt lgkmcnt(0)")


def make_srd(a, d, ptr, nbytes):
    a.e(f"s_mov_b32 s{d}, s{ptr}")
    a.e(f"s_and_b32 s{d + 1}, s{ptr + 1}, 0xffff")
    a.e(f"s_mov_b32 s{d + 2}, 0x{nbytes:x}")
    a.e(f"s_mov_b32 s{d + 3}, 0x00020000")


def kernel_header(name):
    return (
        f".globl {name}\n.p2align 8\n.type {name},@function\n{name}:\n"
    )


def kernel_desc(name, vgprs, sgprs=102):
    acc = (vgprs + 3) // 4 * 4
    return f""".amdhsa_kernel {name}
  .amdhsa_next_free_vgpr {vgprs}
  .amdhsa_next_free_sgpr {sgprs}
  .amdhsa_accum_offset {acc}
  .amdhsa_group_segment_fixed_size 0
  .amdhsa_kernarg_size 112
  .amdhsa_user_sgpr_count 2
  .amdhsa_user_sgpr_kernarg_segment_ptr 1
  .amdhsa_system_sgpr_workgroup_id_x 1
.end_amdhsa_kernel
"""
```

```python
from gen_common import *

K3_NAME = "concat_fin_kernel"


def emit_k3(a):
    a.raw(kernel_header(K3_NAME))
    a.e("s_cmp_ge_u32 s2, 32")
    a.e("s_cbranch_scc1 K3_done")
    load_kernargs(a)
    SRD_WS, SRD_OUT = 44, 48
    make_srd(a, SRD_WS, P_WS, WS_BYTES)
    make_srd(a, SRD_OUT, P_OUT, 4096)
    a.e("s_lshr_b32 s4, s2, 4")
    a.e("s_lshr_b32 s5, s2, 3")
    a.e("s_and_b32 s5, s5, 1")
    a.e("s_and_b32 s6, s2, 7")
    a.e("v_readfirstlane_b32 s7, v0")
    a.nop(4)
    a.e("s_lshr_b32 s7, s7, 6")
    a.e("v_and_b32 v1, 63, v0")
    a.e(f"s_mov_b32 s69, 0x{LOG2E:08x}")
    a.e(f"s_mov_b32 s70, 0x{NEGLOG2E:08x}")
    a.e("v_mov_b32 v10, 0")
    a.e("s_cmp_eq_u32 s4, 0")
    a.e("s_cbranch_scc0 K3_partB")
    a.e("v_and_b32 v2, 31, v1")
    a.e("s_lshl_b32 s8, s5, 7")
    a.e("s_lshl_b32 s9, s7, 5")
    a.e("s_add_u32 s8, s8, s9")
    a.e("v_lshlrev_b32 v3, 3, v2")
    a.e("s_lshl_b32 s9, s8, 3")
    a.e(f"s_add_u32 s9, s9, 0x{WS_STA:x}")
    a.vm(f"buffer_load_dwordx2 v[4:5], v3, s[{SRD_WS}:{SRD_WS + 3}], s9 offen", "st")
    a.e("v_lshlrev_b32 v3, 2, v1")
    a.e("s_lshl_b32 s9, s8, 11")
    a.e("s_lshl_b32 s10, s6, 8")
    a.e("s_add_u32 s9, s9, s10")
    a.e(f"s_add_u32 s9, s9, 0x{WS_YA:x}")
    for p in range(32):
        a.vm(f"buffer_load_dword v{16 + p}, v3, s[{SRD_WS}:{SRD_WS + 3}], s9 offen", "y")
        a.e("s_add_u32 s9, s9, 2048")
    a.wait_vm("st")
    a.nop(2)
    a.e("v_mov_b32_dpp v6, v4 quad_perm:[1,0,3,2] row_mask:0xf bank_mask:0xf")
    a.e("v_max_f32 v6, v6, v4")
    a.nop(2)
    a.e("v_mov_b32_dpp v7, v6 quad_perm:[2,3,0,1] row_mask:0xf bank_mask:0xf")
    a.e("v_max_f32 v6, v6, v7")
    a.e("v_sub_f32 v7, v4, v6")
    a.e("v_mul_f32 v7, s69, v7")
    a.e("v_exp_f32 v7, v7")
    a.nop(1)
    a.e("v_mul_f32 v8, v7, v5")
    a.nop(2)
    a.e("v_mov_b32_dpp v9, v8 quad_perm:[1,0,3,2] row_mask:0xf bank_mask:0xf")
    a.e("v_add_f32 v8, v8, v9")
    a.nop(2)
    a.e("v_mov_b32_dpp v9, v8 quad_perm:[2,3,0,1] row_mask:0xf bank_mask:0xf")
    a.e("v_add_f32 v8, v8, v9")
    a.e("v_rcp_f32 v8, v8")
    a.nop(1)
    a.e("v_mul_f32 v7, v7, v8")
    a.nop(2)
    for p in range(32):
        a.e(f"v_readlane_b32 s{16 + p}, v7, {p}")
    a.nop(4)
    a.wait_vm("y")
    for p in range(32):
        a.e(f"v_fma_f32 v10, s{16 + p}, v{16 + p}, v10")
    a.e("s_branch K3_reduce")
    a.lbl("K3_partB")
    a.e("v_lshlrev_b32 v3, 2, v1")
    a.e("s_lshl_b32 s8, s5, 5")
    a.e("s_lshl_b32 s9, s7, 3")
    a.e("s_add_u32 s8, s8, s9")
    a.e("s_lshl_b32 s9, s8, 11")
    a.e("s_lshl_b32 s10, s6, 8")
    a.e("s_add_u32 s9, s9, s10")
    a.e(f"s_add_u32 s9, s9, 0x{WS_YB:x}")
    for p in range(8):
        a.vm(f"buffer_load_dword v{16 + p}, v3, s[{SRD_WS}:{SRD_WS + 3}], s9 offen", "y")
        a.e("s_add_u32 s9, s9, 2048")
    a.wait_vm("y")
    for p in range(8):
        a.e(f"v_add_f32 v10, v10, v{16 + p}")
    a.lbl("K3_reduce")
    a.e("v_lshlrev_b32 v3, 2, v0")
    a.e("ds_write_b32 v3, v10")
    a.barrier()
    a.e("v_lshlrev_b32 v3, 2, v1")
    for w_ in range(4):
        a.e(f"ds_read_b32 v{12 + w_}, v3 offset:{256 * w_}")
    a.lgkm0()
    a.e("v_add_f32 v12, v12, v13")
    a.e("v_add_f32 v14, v14, v15")
    a.e("v_add_f32 v12, v12, v14")
    a.e("v_cvt_pk_bf16_f32 v12, v12, v12")
    a.e("s_cmp_eq_u32 s7, 0")
    a.e("s_cbranch_scc0 K3_done")
    a.e("s_lshl_b32 s8, s5, 10")
    a.e("s_lshl_b32 s9, s4, 9")
    a.e("s_add_u32 s8, s8, s9")
    a.e("s_lshl_b32 s9, s6, 6")
    a.e("s_add_u32 s8, s8, s9")
    a.e("s_lshl_b32 s8, s8, 1")
    a.e("v_lshlrev_b32 v3, 1, v1")
    a.vm(f"buffer_store_short v12, v3, s[{SRD_OUT}:{SRD_OUT + 3}], s8 offen", "o")
    a.wait_all_vm()
    a.lbl("K3_done")
    a.e("s_endpgm")
    return kernel_desc(K3_NAME, 48, 60)
```

```python
import sys
from gen_common import *
import gen_a, gen_b, gen_k3
MAIN = "concat_heads__mha_block_cached__compressed_kv_cla__decode_kernel"
HDR = open("concat_heads__mha_block_cached__compressed_kv_cla__decode.s.ref").read().split("; Override launch")[0]
opts = sys.argv[2:]
body = ""; descs = ""; launches = ""
def bkernel(name, fn, lds, n=128):
    global body, descs, launches
    a = Asm()
    a.raw(kernel_header(name))
    a.e(f"s_cmp_ge_u32 s2, {n}")
    a.e(f"s_cbranch_scc1 {name}_exit")
    load_kernargs(a)
    a.e(f"s_mov_b32 s{gen_b.S_WG}, s2")
    gen_b.b_preamble(a)
    fn(a)
    a.wait_all_vm()
    a.lbl(f"{name}_exit")
    a.e("s_endpgm")
    body += a.text()
    descs += ".p2align 6\n" + kernel_desc(name, gen_b.B_VGPRS)
    launches += f"; @launch kernel={name} grid=({n},1,1) block=(256,1,1) lds={lds}\n"
bkernel("b1_kernel", lambda a: gen_b.emit_b1(a), 17408)
bkernel("b2_kernel", lambda a: (gen_b.emit_b2_prefetch(a), gen_b.emit_b2_main(a)), gen_b.B_LDS)
bkernel("b3a_kernel", lambda a: (gen_b.emit_b3a_prefetch(a), gen_b.emit_b3a_main(a)), 20480)
bkernel("b3b_kernel", lambda a: (gen_b.emit_b3b_prefetch(a), gen_b.emit_b3b_main(a)), 20480)
a = Asm()
a.raw(kernel_header(MAIN))
a.e("s_cmp_ge_u32 s2, 256")
a.e("s_cbranch_scc1 A_exit")
load_kernargs(a)
a.e(f"s_mov_b32 s{gen_a.S_WG}, s2")
gen_a.emit_role_a(a, interleave=2)
a.lbl("A_exit")
a.e("s_endpgm")
body += a.text(); descs += ".p2align 6\n" + kernel_desc(MAIN, gen_a.A_VGPRS)
launches += f"; @launch kernel={MAIN} grid=(256,1,1) block=(256,1,1) lds={gen_a.A_LDS}\n"
k3 = Asm(); d3 = gen_k3.emit_k3(k3)
body += k3.text(); descs += ".p2align 6\n" + d3
launches += f"; @launch kernel={gen_k3.K3_NAME} grid=(32,1,1) block=(256,1,1) lds=1024\n"
out = HDR + launches + '.amdgcn_target "amdgcn-amd-amdhsa--gfx950"\n.text\n' + body + '.section .rodata,"a"\n' + descs
open(sys.argv[1], "w").write(out)
```

```python
from gen_common import *

S_WG = 3
S_H, S_B, S_S, S_W = 4, 5, 6, 7
S_OKV, S_OWQ, S_OWO = 8, 9, 10
S_T0, S_T1, S_T2 = 11, 12, 13
S_EX = 14
SRD_K, SRD_V, SRD_WQ, SRD_WO, SRD_X, SRD_WS = 44, 48, 52, 56, 60, 64
S_SCALE, S_LOG2E, S_NLOG2E, S_SELLO, S_SELHI = 68, 69, 70, 71, 72
S_OP = 76

V_TID, V_L, V_R, V_CP, V_L16 = 0, 1, 2, 3, 4
V_WQO, V_XO, V_A0 = 5, 6, 7
V_ACC = 8
V_QF = 16
V_M, V_LS = 20, 21
V_SC = 22
V_T = 26
V_U = 34
V_AL, V_NML = 38, 39
V_XP = 40
V_T2 = 56
V_RING = 64
V_big = 192
A_VGPRS = 232

L_Q1 = 0
L_QB = 8192
L_ST = 8704
L_ACC = 12288
L_Y = 20480
A_LDS = 28672

NT = " nt"


def slot(i):
    return V_RING + 32 * i


def common_consts(a):
    a.e(f"s_mov_b32 s{S_SCALE}, 0x{SCALE:08x}")
    a.e(f"s_mov_b32 s{S_LOG2E}, 0x{LOG2E:08x}")
    a.e(f"s_mov_b32 s{S_NLOG2E}, 0x{NEGLOG2E:08x}")
    a.e(f"s_mov_b32 s{S_SELLO}, 0x05040100")
    a.e(f"s_mov_b32 s{S_SELHI}, 0x07060302")


def lane_ids(a):
    a.e(f"v_and_b32 v{V_L}, 63, v0")
    a.e(f"v_lshrrev_b32 v{V_R}, 4, v{V_L}")
    a.e(f"v_and_b32 v{V_CP}, 15, v{V_L}")
    a.e(f"v_lshlrev_b32 v{V_L16}, 4, v{V_L}")
    a.e(f"v_readfirstlane_b32 s{S_W}, v0")
    a.nop(4)
    a.e(f"s_lshr_b32 s{S_W}, s{S_W}, 6")


def wrs_pairs(a, wa, wb, wpair, accs, tmp):
    for k in range(4):
        a.e(f"v_perm_b32 v{tmp}, v{wb + k}, v{wa + k}, s{S_SELLO}")
        a.e(f"v_perm_b32 v{tmp + 1}, v{wb + k}, v{wa + k}, s{S_SELHI}")
        for wp, ac in zip(wpair, accs):
            a.e(f"v_dot2_f32_bf16 v{ac + 2 * k}, v{tmp}, {wp}, v{ac + 2 * k}")
            a.e(f"v_dot2_f32_bf16 v{ac + 2 * k + 1}, v{tmp + 1}, {wp}, v{ac + 2 * k + 1}")


def round_scale4(a, sc, u, t):
    a.e(f"v_cvt_pk_bf16_f32 v{t}, v{sc}, v{sc + 1}")
    a.e(f"v_cvt_pk_bf16_f32 v{t + 1}, v{sc + 2}, v{sc + 3}")
    a.e(f"v_lshlrev_b32 v{u}, 16, v{t}")
    a.e(f"v_and_b32 v{u + 1}, 0xffff0000, v{t}")
    a.e(f"v_lshlrev_b32 v{u + 2}, 16, v{t + 1}")
    a.e(f"v_and_b32 v{u + 3}, 0xffff0000, v{t + 1}")
    for i in range(4):
        a.e(f"v_mul_f32 v{u + i}, s{S_SCALE}, v{u + i}")
    a.e(f"v_cvt_pk_bf16_f32 v{t}, v{u}, v{u + 1}")
    a.e(f"v_cvt_pk_bf16_f32 v{t + 1}, v{u + 2}, v{u + 3}")
    a.e(f"v_lshlrev_b32 v{u}, 16, v{t}")
    a.e(f"v_and_b32 v{u + 1}, 0xffff0000, v{t}")
    a.e(f"v_lshlrev_b32 v{u + 2}, 16, v{t + 1}")
    a.e(f"v_and_b32 v{u + 3}, 0xffff0000, v{t + 1}")


S_STAMP = 92
WS_DIAG = 0x800000


def stamp(a, k, on):
    if on:
        a.e(f"s_memrealtime s[{S_STAMP + 2 * k}:{S_STAMP + 2 * k + 1}]")


def dump_stamps(a, srd, wgreg, n, extra_rt=None):
    a.e("s_waitcnt lgkmcnt(0)")
    a.e(f"s_memrealtime s[{S_STAMP + 2 * n}:{S_STAMP + 2 * n + 1}]")
    a.e("s_waitcnt lgkmcnt(0)")
    a.e(f"s_lshl_b32 s{S_T1}, s{wgreg}, 6")
    a.e(f"s_add_u32 s{S_T1}, s{S_T1}, 0x{WS_DIAG:x}")
    a.e("v_cmp_eq_u32 vcc, 0, v0")
    a.e(f"s_and_saveexec_b64 s[{S_EX}:{S_EX + 1}], vcc")
    for k in range(n + 1):
        a.e(f"v_mov_b32 v{V_T + 1}, {4 * k}")
        a.e(f"v_mov_b32 v{V_T + 2}, s{S_STAMP + 2 * k}")
        a.e(f"buffer_store_dword v{V_T + 2}, v{V_T + 1}, s[{srd}:{srd + 3}], s{S_T1} offen")
    a.e(f"s_mov_b64 exec, s[{S_EX}:{S_EX + 1}]")


def emit_role_a(a, sc="", nt=NT, diag=False, interleave=False, R=4):
    a.c("================ ROLE A ================")
    a.e(f"s_and_b32 s{S_T0}, s{S_WG}, 7")
    a.e(f"s_lshr_b32 s{S_T1}, s{S_WG}, 3")
    a.e(f"s_lshr_b32 s{S_T2}, s{S_T1}, 3")
    a.e(f"s_lshl_b32 s{S_T0}, s{S_T0}, 2")
    a.e(f"s_add_u32 s{S_H}, s{S_T0}, s{S_T2}")
    a.e(f"s_and_b32 s{S_T1}, s{S_T1}, 7")
    a.e(f"s_lshr_b32 s{S_B}, s{S_T1}, 2")
    a.e(f"s_and_b32 s{S_S}, s{S_T1}, 3")
    stamp(a, 0, diag)
    lane_ids(a)
    common_consts(a)
    make_srd(a, SRD_K, P_AK, 0x4000000)
    make_srd(a, SRD_V, P_AV, 0x4000000)
    make_srd(a, SRD_WQ, P_AWQ, 0x400000)
    make_srd(a, SRD_WO, P_AWO, 0x400000)
    make_srd(a, SRD_X, P_AX, 2048)
    make_srd(a, SRD_WS, P_WS, WS_BYTES)
    a.e(f"s_lshl_b32 s{S_T0}, s{S_B}, 5")
    a.e(f"s_add_u32 s{S_T0}, s{S_T0}, s{S_H}")
    a.e(f"s_lshl_b32 s{S_T0}, s{S_T0}, 12")
    if interleave == 2:
        a.e(f"s_lshl_b32 s{S_T1}, s{S_S}, 6")
        a.e(f"s_add_u32 s{S_T0}, s{S_T0}, s{S_T1}")
        a.e(f"s_lshl_b32 s{S_T1}, s{S_W}, 4")
    else:
        a.e(f"s_lshl_b32 s{S_T1}, s{S_S}, 10")
        a.e(f"s_add_u32 s{S_T0}, s{S_T0}, s{S_T1}")
        a.e(f"s_lshl_b32 s{S_T1}, s{S_W}, {4 if interleave else 8}")
    a.e(f"s_add_u32 s{S_T0}, s{S_T0}, s{S_T1}")
    a.e(f"s_lshl_b32 s{S_OKV}, s{S_T0}, 8")
    a.e(f"s_lshl_b32 s{S_T0}, s{S_W}, 20")
    a.e(f"s_lshl_b32 s{S_T1}, s{S_H}, 8")
    a.e(f"s_add_u32 s{S_OWQ}, s{S_T0}, s{S_T1}")
    a.e(f"s_lshl_b32 s{S_T0}, s{S_B}, 10")
    a.e(f"s_lshl_b32 s{S_T1}, s{S_W}, 8")
    a.e(f"s_add_u32 s{S_T2}, s{S_T0}, s{S_T1}")
    a.e(f"s_lshl_b32 s{S_T0}, s{S_H}, 17")
    a.e(f"s_lshl_b32 s{S_T1}, s{S_W}, 15")
    a.e(f"s_add_u32 s{S_OWO}, s{S_T0}, s{S_T1}")
    a.e(f"v_lshlrev_b32 v{V_WQO}, 18, v{V_R}")
    a.e(f"v_lshl_add_u32 v{V_WQO}, v{V_CP}, 4, v{V_WQO}")
    a.e(f"v_lshlrev_b32 v{V_XO}, 6, v{V_R}")
    for i in range(4):
        a.vm(f"buffer_load_dwordx4 v[{V_XP + 4 * i}:{V_XP + 4 * i + 3}], v{V_XO}, s[{SRD_X}:{SRD_X + 3}], s{S_T2} offen offset:{16 * i}", "x")
    for i in range(8):
        a.e(f"v_mov_b32 v{V_ACC + i}, 0")

    jobs = [("wq", i) for i in range(4)] + [("kv", t) for t in range(16)] + [("wo", i) for i in range(4)]

    def issue_part(ji, which):
        kind, idx = jobs[ji]
        sl = slot(ji % R) + (16 if which == "V" else 0)
        srd = SRD_V if which == "V" else SRD_K
        for j in range(4):
            a.vm(f"buffer_load_dwordx4 v[{sl + 4 * j}:{sl + 4 * j + 3}], v{V_L16}, s[{srd}:{srd + 3}], s{S_OKV} offen offset:{1024 * j}{nt}", f"{which}{idx}")
        if which == "V":
            a.e(f"s_add_u32 s{S_OKV}, s{S_OKV}, {(4096, 16384, 65536)[int(interleave)]}")

    def issue_job(ji):
        if ji >= len(jobs):
            return
        kind, idx = jobs[ji]
        sl = slot(ji % R)
        if kind == "kv":
            issue_part(ji, "K")
            issue_part(ji, "V")
        elif kind == "wq":
            for i in range(8):
                a.vm(f"buffer_load_dwordx4 v[{sl + 4 * i}:{sl + 4 * i + 3}], v{V_WQO}, s[{SRD_WQ}:{SRD_WQ + 3}], s{S_OWQ} offen", f"wq{idx}")
                a.e(f"s_add_u32 s{S_OWQ}, s{S_OWQ}, 8192")
        else:
            for i in range(8):
                a.vm(f"buffer_load_dwordx4 v[{sl + 4 * i}:{sl + 4 * i + 3}], v{V_L16}, s[{SRD_WO}:{SRD_WO + 3}], s{S_OWO} offen", f"wo{idx}")
                a.e(f"s_add_u32 s{S_OWO}, s{S_OWO}, 1024")

    for ji in range(R):
        issue_job(ji)
    a.wait_vm("x")
    for bt in range(4):
        sl = slot(bt % R)
        a.wait_vm(f"wq{bt}")
        for i in range(4):
            wrs_pairs(a, sl + 8 * i, sl + 8 * i + 4, [f"v{V_XP + 4 * bt + i}"], [V_ACC], V_T)
        issue_job(bt + R)
    a.nop(4)
    a.c("q reduce")
    a.e(f"v_lshlrev_b32 v{V_A0}, 2, v{V_R}")
    a.e(f"s_lshl_b32 s{S_T0}, s{S_W}, 4")
    a.e(f"v_add_u32 v{V_A0}, s{S_T0}, v{V_A0}")
    a.e(f"v_lshlrev_b32 v{V_T}, 7, v{V_A0}")
    a.e(f"v_lshl_add_u32 v{V_T}, v{V_CP}, 5, v{V_T}")
    a.e(f"ds_write_b128 v{V_T}, v[{V_ACC}:{V_ACC + 3}] offset:{L_Q1}")
    a.e(f"ds_write_b128 v{V_T}, v[{V_ACC + 4}:{V_ACC + 7}] offset:{L_Q1 + 16}")
    a.barrier()
    a.e(f"v_and_b32 v{V_T}, 127, v0")
    a.e(f"v_lshlrev_b32 v{V_T}, 2, v{V_T}")
    for s_ in range(16):
        a.e(f"ds_read_b32 v{V_XP + s_}, v{V_T} offset:{L_Q1 + 512 * s_}")
    a.lgkm0()
    a.e(f"v_add_f32 v{V_T + 1}, v{V_XP}, v{V_XP + 1}")
    for k in range(2, 16):
        a.e(f"v_add_f32 v{V_T + 1}, v{V_T + 1}, v{V_XP + k}")
    a.e(f"v_cvt_pk_bf16_f32 v{V_T + 1}, v{V_T + 1}, v{V_T + 1}")
    a.e(f"v_lshrrev_b32 v{V_T}, 1, v{V_T}")
    a.e(f"ds_write_b16 v{V_T}, v{V_T + 1} offset:{L_QB}")
    a.barrier()
    a.e(f"v_lshlrev_b32 v{V_T}, 4, v{V_CP}")
    a.e(f"ds_read_b128 v[{V_QF}:{V_QF + 3}], v{V_T} offset:{L_QB}")
    a.e(f"v_mov_b32 v{V_M}, 0xff800000")
    a.e(f"v_mov_b32 v{V_LS}, 0")
    for i in range(8):
        a.e(f"v_mov_b32 v{V_ACC + i}, 0")
    a.lgkm0()

    stamp(a, 1, diag)
    for t in range(16):
        ji = 4 + t
        sl = slot(ji % R)
        nxt = ji + R
        split = nxt < len(jobs) and jobs[nxt][0] == "kv"
        a.c(f"tile {t}")
        a.wait_vm(f"K{t}")
        for i in range(4):
            for j in range(4):
                src2 = "0" if i == 0 else f"v{V_SC + j}"
                a.e(f"v_dot2_f32_bf16 v{V_SC + j}, v{sl + 4 * j + i}, v{V_QF + i}, {src2}")
        for step in (8, 4, 2, 1):
            for j in range(4):
                a.e(f"v_add_f32_dpp v{V_SC + j}, v{V_SC + j}, v{V_SC + j} row_ror:{step} row_mask:0xf bank_mask:0xf")
        if split:
            issue_part(nxt, "K")
        round_scale4(a, V_SC, V_U, V_T)
        a.e(f"v_max3_f32 v{V_T}, v{V_U}, v{V_U + 1}, v{V_U + 2}")
        a.e(f"v_max3_f32 v{V_T}, v{V_T}, v{V_U + 3}, v{V_M}")
        a.e(f"v_sub_f32 v{V_T + 1}, v{V_M}, v{V_T}")
        a.e(f"v_mul_f32 v{V_NML}, s{S_NLOG2E}, v{V_T}")
        a.e(f"v_mul_f32 v{V_T + 1}, s{S_LOG2E}, v{V_T + 1}")
        a.e(f"v_mov_b32 v{V_M}, v{V_T}")
        for i in range(4):
            a.e(f"v_fma_f32 v{V_U + i}, v{V_U + i}, s{S_LOG2E}, v{V_NML}")
        a.e(f"v_exp_f32 v{V_AL}, v{V_T + 1}")
        for i in range(4):
            a.e(f"v_exp_f32 v{V_U + i}, v{V_U + i}")
        a.nop(1)
        a.e(f"v_fma_f32 v{V_LS}, v{V_LS}, v{V_AL}, v{V_U}")
        for i in range(8):
            a.e(f"v_mul_f32 v{V_ACC + i}, v{V_AL}, v{V_ACC + i}")
        a.e(f"v_add_f32 v{V_T}, v{V_U + 1}, v{V_U + 2}")
        a.e(f"v_add_f32 v{V_T}, v{V_T}, v{V_U + 3}")
        a.e(f"v_add_f32 v{V_LS}, v{V_LS}, v{V_T}")
        a.wait_vm(f"V{t}")
        vb = sl + 16
        for j in range(4):
            for k in range(4):
                a.e(f"v_lshlrev_b32 v{V_T + k}, 16, v{vb + 4 * j + k}")
                a.e(f"v_and_b32 v{V_T + 4 + k}, 0xffff0000, v{vb + 4 * j + k}")
            for k in range(4):
                a.e(f"v_fmac_f32 v{V_ACC + 2 * k}, v{V_U + j}, v{V_T + k}")
                a.e(f"v_fmac_f32 v{V_ACC + 2 * k + 1}, v{V_U + j}, v{V_T + 4 + k}")
        if split:
            issue_part(nxt, "V")
        else:
            issue_job(nxt)

    stamp(a, 2, diag)
    a.c("WG combine")
    a.e(f"ds_write_b32 v{V_A0}, v{V_M} offset:{L_ST}")
    a.e(f"ds_write_b32 v{V_A0}, v{V_LS} offset:{L_ST + 64}")
    a.e(f"v_lshlrev_b32 v{V_T}, 7, v{V_A0}")
    a.e(f"v_lshl_add_u32 v{V_T}, v{V_CP}, 5, v{V_T}")
    a.e(f"ds_write_b128 v{V_T}, v[{V_ACC}:{V_ACC + 3}] offset:{L_ACC}")
    a.e(f"ds_write_b128 v{V_T}, v[{V_ACC + 4}:{V_ACC + 7}] offset:{L_ACC + 16}")
    a.barrier()
    VM_ = V_big
    VL_ = V_big + 16
    a.e(f"v_mov_b32 v{V_T}, 0")
    for i in range(4):
        a.e(f"ds_read_b128 v[{VM_ + 4 * i}:{VM_ + 4 * i + 3}], v{V_T} offset:{L_ST + 16 * i}")
        a.e(f"ds_read_b128 v[{VL_ + 4 * i}:{VL_ + 4 * i + 3}], v{V_T} offset:{L_ST + 64 + 16 * i}")
    a.e(f"v_and_b32 v{V_T + 1}, 31, v{V_L}")
    a.e(f"s_lshl_b32 s{S_T0}, s{S_W}, 5")
    a.e(f"v_add_u32 v{V_T + 1}, s{S_T0}, v{V_T + 1}")
    a.e(f"v_lshlrev_b32 v{V_T + 1}, 2, v{V_T + 1}")
    VA_ = V_XP
    for s_ in range(16):
        a.e(f"ds_read_b32 v{VA_ + s_}, v{V_T + 1} offset:{L_ACC + 512 * s_}")
    a.lgkm0()
    VG = V_big + 32
    a.e(f"v_max3_f32 v{VG}, v{VM_}, v{VM_ + 1}, v{VM_ + 2}")
    for i in range(3, 15, 2):
        a.e(f"v_max3_f32 v{VG}, v{VG}, v{VM_ + i}, v{VM_ + i + 1}")
    a.e(f"v_max_f32 v{VG}, v{VG}, v{VM_ + 15}")
    a.e(f"v_mul_f32 v{V_NML}, s{S_NLOG2E}, v{VG}")
    for i in range(16):
        a.e(f"v_fma_f32 v{VM_ + i}, v{VM_ + i}, s{S_LOG2E}, v{V_NML}")
    for i in range(16):
        a.e(f"v_exp_f32 v{VM_ + i}, v{VM_ + i}")
    a.nop(1)
    VLG = V_big + 33
    VO = V_T2 + 2
    a.e(f"v_mul_f32 v{VLG}, v{VM_}, v{VL_}")
    a.e(f"v_mul_f32 v{VO}, v{VM_}, v{VA_}")
    for i in range(1, 16):
        a.e(f"v_fmac_f32 v{VLG}, v{VM_ + i}, v{VL_ + i}")
        a.e(f"v_fmac_f32 v{VO}, v{VM_ + i}, v{VA_ + i}")
    a.nop(2)
    a.e(f"v_mov_b32_dpp v{V_T2 + 3}, v{VO} quad_perm:[1,0,3,2] row_mask:0xf bank_mask:0xf")
    a.e(f"v_cvt_pk_bf16_f32 v{V_T2 + 4}, v{VO}, v{V_T2 + 3}")
    a.nop(2)
    for i in range(16):
        a.e(f"v_readlane_b32 s{S_OP + i}, v{V_T2 + 4}, {2 * i}")
    for i in range(8):
        a.e(f"v_mov_b32 v{V_ACC + i}, 0")
    a.nop(4)
    a.c("out projection")
    for bt in range(4):
        ji = 20 + bt
        a.wait_vm(f"wo{bt}")
        sl = slot(ji % R)
        for k in range(4):
            wrs_pairs(a, sl + 8 * k, sl + 8 * k + 4, [f"s{S_OP + 4 * bt + k}"], [V_ACC], V_T)
        issue_job(ji + R)
    a.nop(4)
    a.e(f"v_lshlrev_b32 v{V_T}, 5, v{V_L}")
    a.e(f"s_lshl_b32 s{S_T0}, s{S_W}, 11")
    a.e(f"v_add_u32 v{V_T}, s{S_T0}, v{V_T}")
    a.e(f"ds_write_b128 v{V_T}, v[{V_ACC}:{V_ACC + 3}] offset:{L_Y}")
    a.e(f"ds_write_b128 v{V_T}, v[{V_ACC + 4}:{V_ACC + 7}] offset:{L_Y + 16}")
    a.barrier()
    a.e(f"v_lshlrev_b32 v{V_T}, 3, v0")
    for w_ in range(4):
        a.e(f"ds_read_b64 v[{V_T2 + 2 * w_}:{V_T2 + 2 * w_ + 1}], v{V_T} offset:{L_Y + 2048 * w_}")
    a.lgkm0()
    for k in range(2):
        a.e(f"v_add_f32 v{V_T2 + k}, v{V_T2 + k}, v{V_T2 + 2 + k}")
        a.e(f"v_add_f32 v{V_T2 + 4 + k}, v{V_T2 + 4 + k}, v{V_T2 + 6 + k}")
    for k in range(2):
        a.e(f"v_add_f32 v{V_T2 + k}, v{V_T2 + k}, v{V_T2 + 4 + k}")
    a.e(f"s_lshl_b32 s{S_T0}, s{S_B}, 5")
    a.e(f"s_add_u32 s{S_T0}, s{S_T0}, s{S_H}")
    a.e(f"s_lshl_b32 s{S_T0}, s{S_T0}, 2")
    a.e(f"s_add_u32 s{S_T0}, s{S_T0}, s{S_S}")
    a.e(f"s_lshl_b32 s{S_T1}, s{S_T0}, 11")
    a.e(f"s_add_u32 s{S_T1}, s{S_T1}, 0x{WS_YA:x}")
    a.vm(f"buffer_store_dwordx2 v[{V_T2}:{V_T2 + 1}], v{V_T}, s[{SRD_WS}:{SRD_WS + 3}], s{S_T1} offen{sc}", "st")
    a.e(f"s_lshl_b32 s{S_T1}, s{S_T0}, 3")
    a.e(f"s_add_u32 s{S_T1}, s{S_T1}, 0x{WS_STA:x}")
    a.e(f"v_mov_b32 v{V_T2 + 4}, v{VG}")
    a.e(f"v_mov_b32 v{V_T2 + 5}, v{VLG}")
    a.e(f"v_mov_b32 v{V_T + 1}, 0")
    a.e(f"v_cmp_eq_u32 vcc, 0, v0")
    a.e(f"s_and_saveexec_b64 s[{S_EX}:{S_EX + 1}], vcc")
    a.vm(f"buffer_store_dwordx2 v[{V_T2 + 4}:{V_T2 + 5}], v{V_T + 1}, s[{SRD_WS}:{SRD_WS + 3}], s{S_T1} offen{sc}", "st")
    a.e(f"s_mov_b64 exec, s[{S_EX}:{S_EX + 1}]")
    a.wait_all_vm()
    if diag:
        stamp(a, 3, diag)
        dump_stamps(a, SRD_WS, S_WG, 4)
        a.wait_all_vm()
    a.e("s_endpgm")
```

```python
from gen_common import *
from gen_a import (wrs_pairs, round_scale4, common_consts, lane_ids, S_SCALE, S_LOG2E, S_NLOG2E,
                   S_SELLO, S_SELHI, S_W, V_L, V_R, V_CP, V_L16)

S_WG = 3
S_H, S_B, S_S = 4, 5, 6
S_OKV, S_OWQ, S_OWO = 8, 9, 10
S_T0, S_T1, S_T2 = 11, 12, 13
S_EX = 14
SRD_K, SRD_V, SRD_WQ, SRD_WO, SRD_X, SRD_WS = 44, 48, 52, 56, 60, 64
S_OKVL = 73
S_OP = 76
S_STAMP = 92
WS_DIAG = 0x800000

V_WQO, V_XO, V_A0 = 5, 6, 7
V_ACC = 8
V_QF = 16
V_M, V_LS = 20, 21
V_SC = 22
V_T = 26
V_U = 34
V_AL, V_NML = 38, 39
V_XP = 40
V_T2 = 56
V_RING = 64
V_WO = 128
A_VGPRS = 256

L_Q1 = 0
L_QB = 8192
L_ST = 8704
L_ACC = 12288
L_Y = 20480
A_LDS = 28672
NT = " nt"
NTILES = 22


def slot(i):
    return V_RING + 32 * i


def stamp(a, k, on):
    if on:
        a.e(f"s_memrealtime s[{S_STAMP + 2 * k}:{S_STAMP + 2 * k + 1}]")


def emit_role_a(a, sc="", nt=NT, diag=False, R=2, wo_at=15):
    a.c("================ ROLE A (v3) ================")
    a.e(f"s_and_b32 s{S_T0}, s{S_WG}, 7")
    a.e(f"s_lshr_b32 s{S_T1}, s{S_WG}, 3")
    a.e(f"s_mul_i32 s{S_T2}, s{S_T1}, 43")
    a.e(f"s_lshr_b32 s{S_T2}, s{S_T2}, 8")
    a.e(f"s_lshl_b32 s{S_T0}, s{S_T0}, 2")
    a.e(f"s_add_u32 s{S_H}, s{S_T0}, s{S_T2}")
    a.e(f"s_mul_i32 s{S_T2}, s{S_T2}, 6")
    a.e(f"s_sub_u32 s{S_T1}, s{S_T1}, s{S_T2}")
    a.e(f"s_cmp_ge_u32 s{S_T1}, 3")
    a.e(f"s_cselect_b32 s{S_B}, 1, 0")
    a.e(f"s_mul_i32 s{S_T2}, s{S_B}, 3")
    a.e(f"s_sub_u32 s{S_S}, s{S_T1}, s{S_T2}")
    stamp(a, 0, diag)
    lane_ids(a)
    common_consts(a)
    make_srd(a, SRD_K, P_AK, 0x4000000)
    make_srd(a, SRD_V, P_AV, 0x4000000)
    make_srd(a, SRD_WQ, P_AWQ, 0x400000)
    make_srd(a, SRD_WO, P_AWO, 0x400000)
    make_srd(a, SRD_X, P_AX, 2048)
    make_srd(a, SRD_WS, P_WS, WS_BYTES)
    a.e(f"s_lshl_b32 s{S_T0}, s{S_B}, 5")
    a.e(f"s_add_u32 s{S_T0}, s{S_T0}, s{S_H}")
    a.e(f"s_lshl_b32 s{S_T0}, s{S_T0}, 20")
    a.e(f"s_lshl_b32 s{S_T1}, s{S_S}, 2")
    a.e(f"s_add_u32 s{S_T1}, s{S_T1}, s{S_W}")
    a.e(f"s_lshl_b32 s{S_T1}, s{S_T1}, 12")
    a.e(f"s_add_u32 s{S_OKV}, s{S_T0}, s{S_T1}")
    a.e(f"s_cmp_eq_u32 s{S_S}, 0")
    a.e(f"s_cselect_b32 s{S_OKVL}, 0, 0x40000000")
    a.e(f"s_lshl_b32 s{S_T0}, s{S_W}, 20")
    a.e(f"s_lshl_b32 s{S_T1}, s{S_H}, 8")
    a.e(f"s_add_u32 s{S_OWQ}, s{S_T0}, s{S_T1}")
    a.e(f"s_lshl_b32 s{S_T0}, s{S_H}, 17")
    a.e(f"s_lshl_b32 s{S_T1}, s{S_W}, 15")
    a.e(f"s_add_u32 s{S_OWO}, s{S_T0}, s{S_T1}")
    a.e(f"s_lshl_b32 s{S_T0}, s{S_B}, 10")
    a.e(f"s_lshl_b32 s{S_T1}, s{S_W}, 8")
    a.e(f"s_add_u32 s{S_T2}, s{S_T0}, s{S_T1}")
    a.e(f"v_lshlrev_b32 v{V_WQO}, 18, v{V_R}")
    a.e(f"v_lshl_add_u32 v{V_WQO}, v{V_CP}, 4, v{V_WQO}")
    a.e(f"v_lshlrev_b32 v{V_XO}, 6, v{V_R}")
    for i in range(4):
        a.vm(f"buffer_load_dwordx4 v[{V_XP + 4 * i}:{V_XP + 4 * i + 3}], v{V_XO}, s[{SRD_X}:{SRD_X + 3}], s{S_T2} offen offset:{16 * i}", "x")
    for i in range(8):
        a.e(f"v_mov_b32 v{V_ACC + i}, 0")

    jobs = [("wq", i) for i in range(4)] + [("kv", t) for t in range(NTILES)]

    def issue_part(ji, which):
        kind, idx = jobs[ji]
        sl = slot(ji % R) + (16 if which == "V" else 0)
        srd = SRD_V if which == "V" else SRD_K
        so = S_OKV
        if idx == NTILES - 1:
            if which == "K":
                a.e(f"s_add_u32 s{S_OKV}, s{S_OKV}, s{S_OKVL}")
        for j in range(4):
            a.vm(f"buffer_load_dwordx4 v[{sl + 4 * j}:{sl + 4 * j + 3}], v{V_L16}, s[{srd}:{srd + 3}], s{so} offen offset:{1024 * j}{nt}", f"{which}{idx}")
        if which == "V":
            a.e(f"s_add_u32 s{S_OKV}, s{S_OKV}, {12 * 4096}")

    def issue_job(ji):
        if ji >= len(jobs):
            return
        kind, idx = jobs[ji]
        sl = slot(ji % R)
        if kind == "kv":
            issue_part(ji, "K")
            issue_part(ji, "V")
        else:
            for i in range(8):
                a.vm(f"buffer_load_dwordx4 v[{sl + 4 * i}:{sl + 4 * i + 3}], v{V_WQO}, s[{SRD_WQ}:{SRD_WQ + 3}], s{S_OWQ} offen", f"wq{idx}")
                a.e(f"s_add_u32 s{S_OWQ}, s{S_OWQ}, 8192")

    def issue_wo():
        for i in range(32):
            a.vm(f"buffer_load_dwordx4 v[{V_WO + 4 * i}:{V_WO + 4 * i + 3}], v{V_L16}, s[{SRD_WO}:{SRD_WO + 3}], s{S_OWO} offen", "wo")
            a.e(f"s_add_u32 s{S_OWO}, s{S_OWO}, 1024")

    for ji in range(R):
        issue_job(ji)
    a.wait_vm("x")
    for bt in range(4):
        sl = slot(bt % R)
        a.wait_vm(f"wq{bt}")
        for i in range(4):
            wrs_pairs(a, sl + 8 * i, sl + 8 * i + 4, [f"v{V_XP + 4 * bt + i}"], [V_ACC], V_T)
        issue_job(bt + R)
    a.nop(4)
    a.c("q reduce")
    a.e(f"v_lshlrev_b32 v{V_A0}, 2, v{V_R}")
    a.e(f"s_lshl_b32 s{S_T0}, s{S_W}, 4")
    a.e(f"v_add_u32 v{V_A0}, s{S_T0}, v{V_A0}")
    a.e(f"v_lshlrev_b32 v{V_T}, 7, v{V_A0}")
    a.e(f"v_lshl_add_u32 v{V_T}, v{V_CP}, 5, v{V_T}")
    a.e(f"ds_write_b128 v{V_T}, v[{V_ACC}:{V_ACC + 3}] offset:{L_Q1}")
    a.e(f"ds_write_b128 v{V_T}, v[{V_ACC + 4}:{V_ACC + 7}] offset:{L_Q1 + 16}")
    a.barrier()
    a.e(f"v_and_b32 v{V_T}, 127, v0")
    a.e(f"v_lshlrev_b32 v{V_T}, 2, v{V_T}")
    for s_ in range(16):
        a.e(f"ds_read_b32 v{V_XP + s_}, v{V_T} offset:{L_Q1 + 512 * s_}")
    a.lgkm0()
    a.e(f"v_add_f32 v{V_T + 1}, v{V_XP}, v{V_XP + 1}")
    for k in range(2, 16):
        a.e(f"v_add_f32 v{V_T + 1}, v{V_T + 1}, v{V_XP + k}")
    a.e(f"v_cvt_pk_bf16_f32 v{V_T + 1}, v{V_T + 1}, v{V_T + 1}")
    a.e(f"v_lshrrev_b32 v{V_T}, 1, v{V_T}")
    a.e(f"ds_write_b16 v{V_T}, v{V_T + 1} offset:{L_QB}")
    a.barrier()
    a.e(f"v_lshlrev_b32 v{V_T}, 4, v{V_CP}")
    a.e(f"ds_read_b128 v[{V_QF}:{V_QF + 3}], v{V_T} offset:{L_QB}")
    a.e(f"v_mov_b32 v{V_M}, 0xff800000")
    a.e(f"v_mov_b32 v{V_LS}, 0")
    for i in range(8):
        a.e(f"v_mov_b32 v{V_ACC + i}, 0")
    a.lgkm0()
    stamp(a, 1, diag)

    for t in range(NTILES):
        ji = 4 + t
        sl = slot(ji % R)
        nxt = ji + R
        has_next = nxt < len(jobs)
        a.c(f"tile {t}")
        if t == NTILES - 1:
            a.e(f"s_cmp_eq_u32 s{S_S}, 0")
            a.e("s_cbranch_scc0 A_skip_last")
        a.wait_vm(f"K{t}")
        for i in range(4):
            for j in range(4):
                src2 = "0" if i == 0 else f"v{V_SC + j}"
                a.e(f"v_dot2_f32_bf16 v{V_SC + j}, v{sl + 4 * j + i}, v{V_QF + i}, {src2}")
        for step in (8, 4, 2, 1):
            for j in range(4):
                a.e(f"v_add_f32_dpp v{V_SC + j}, v{V_SC + j}, v{V_SC + j} row_ror:{step} row_mask:0xf bank_mask:0xf")
        if has_next:
            issue_part(nxt, "K")
        round_scale4(a, V_SC, V_U, V_T)
        a.e(f"v_max3_f32 v{V_T}, v{V_U}, v{V_U + 1}, v{V_U + 2}")
        a.e(f"v_max3_f32 v{V_T}, v{V_T}, v{V_U + 3}, v{V_M}")
        a.e(f"v_sub_f32 v{V_T + 1}, v{V_M}, v{V_T}")
        a.e(f"v_mul_f32 v{V_NML}, s{S_NLOG2E}, v{V_T}")
        a.e(f"v_mul_f32 v{V_T + 1}, s{S_LOG2E}, v{V_T + 1}")
        a.e(f"v_mov_b32 v{V_M}, v{V_T}")
        for i in range(4):
            a.e(f"v_fma_f32 v{V_U + i}, v{V_U + i}, s{S_LOG2E}, v{V_NML}")
        a.e(f"v_exp_f32 v{V_AL}, v{V_T + 1}")
        for i in range(4):
            a.e(f"v_exp_f32 v{V_U + i}, v{V_U + i}")
        a.nop(1)
        a.e(f"v_fma_f32 v{V_LS}, v{V_LS}, v{V_AL}, v{V_U}")
        for i in range(8):
            a.e(f"v_mul_f32 v{V_ACC + i}, v{V_AL}, v{V_ACC + i}")
        a.e(f"v_add_f32 v{V_T}, v{V_U + 1}, v{V_U + 2}")
        a.e(f"v_add_f32 v{V_T}, v{V_T}, v{V_U + 3}")
        a.e(f"v_add_f32 v{V_LS}, v{V_LS}, v{V_T}")
        a.wait_vm(f"V{t}")
        vb = sl + 16
        for j in range(4):
            for k in range(4):
                a.e(f"v_lshlrev_b32 v{V_T + k}, 16, v{vb + 4 * j + k}")
                a.e(f"v_and_b32 v{V_T + 4 + k}, 0xffff0000, v{vb + 4 * j + k}")
            for k in range(4):
                a.e(f"v_fmac_f32 v{V_ACC + 2 * k}, v{V_U + j}, v{V_T + k}")
                a.e(f"v_fmac_f32 v{V_ACC + 2 * k + 1}, v{V_U + j}, v{V_T + 4 + k}")
        if has_next:
            issue_part(nxt, "V")
        if t == wo_at:
            issue_wo()
    a.lbl("A_skip_last")

    stamp(a, 2, diag)
    a.c("WG combine")
    a.e(f"ds_write_b32 v{V_A0}, v{V_M} offset:{L_ST}")
    a.e(f"ds_write_b32 v{V_A0}, v{V_LS} offset:{L_ST + 64}")
    a.e(f"v_lshlrev_b32 v{V_T}, 7, v{V_A0}")
    a.e(f"v_lshl_add_u32 v{V_T}, v{V_CP}, 5, v{V_T}")
    a.e(f"ds_write_b128 v{V_T}, v[{V_ACC}:{V_ACC + 3}] offset:{L_ACC}")
    a.e(f"ds_write_b128 v{V_T}, v[{V_ACC + 4}:{V_ACC + 7}] offset:{L_ACC + 16}")
    a.barrier()
    VM_ = V_RING
    VL_ = V_RING + 16
    VA_ = V_RING + 32
    VG, VLG = V_RING + 48, V_RING + 49
    a.e(f"v_mov_b32 v{V_T}, 0")
    for i in range(4):
        a.e(f"ds_read_b128 v[{VM_ + 4 * i}:{VM_ + 4 * i + 3}], v{V_T} offset:{L_ST + 16 * i}")
        a.e(f"ds_read_b128 v[{VL_ + 4 * i}:{VL_ + 4 * i + 3}], v{V_T} offset:{L_ST + 64 + 16 * i}")
    a.e(f"v_and_b32 v{V_T + 1}, 31, v{V_L}")
    a.e(f"s_lshl_b32 s{S_T0}, s{S_W}, 5")
    a.e(f"v_add_u32 v{V_T + 1}, s{S_T0}, v{V_T + 1}")
    a.e(f"v_lshlrev_b32 v{V_T + 1}, 2, v{V_T + 1}")
    for s_ in range(16):
        a.e(f"ds_read_b32 v{VA_ + s_}, v{V_T + 1} offset:{L_ACC + 512 * s_}")
    a.lgkm0()
    a.e(f"v_max3_f32 v{VG}, v{VM_}, v{VM_ + 1}, v{VM_ + 2}")
    for i in range(3, 15, 2):
        a.e(f"v_max3_f32 v{VG}, v{VG}, v{VM_ + i}, v{VM_ + i + 1}")
    a.e(f"v_max_f32 v{VG}, v{VG}, v{VM_ + 15}")
    a.e(f"v_mul_f32 v{V_NML}, s{S_NLOG2E}, v{VG}")
    for i in range(16):
        a.e(f"v_fma_f32 v{VM_ + i}, v{VM_ + i}, s{S_LOG2E}, v{V_NML}")
    for i in range(16):
        a.e(f"v_exp_f32 v{VM_ + i}, v{VM_ + i}")
    a.nop(1)
    VO = V_T2 + 2
    a.e(f"v_mul_f32 v{VLG}, v{VM_}, v{VL_}")
    a.e(f"v_mul_f32 v{VO}, v{VM_}, v{VA_}")
    for i in range(1, 16):
        a.e(f"v_fmac_f32 v{VLG}, v{VM_ + i}, v{VL_ + i}")
        a.e(f"v_fmac_f32 v{VO}, v{VM_ + i}, v{VA_ + i}")
    a.nop(2)
    a.e(f"v_mov_b32_dpp v{V_T2 + 3}, v{VO} quad_perm:[1,0,3,2] row_mask:0xf bank_mask:0xf")
    a.e(f"v_cvt_pk_bf16_f32 v{V_T2 + 4}, v{VO}, v{V_T2 + 3}")
    a.nop(2)
    for i in range(16):
        a.e(f"v_readlane_b32 s{S_OP + i}, v{V_T2 + 4}, {2 * i}")
    for i in range(8):
        a.e(f"v_mov_b32 v{V_ACC + i}, 0")
    a.nop(4)
    a.c("out projection")
    a.wait_vm("wo")
    for k in range(16):
        wrs_pairs(a, V_WO + 8 * k, V_WO + 8 * k + 4, [f"s{S_OP + k}"], [V_ACC], V_T)
    a.nop(4)
    a.e(f"v_lshlrev_b32 v{V_T}, 5, v{V_L}")
    a.e(f"s_lshl_b32 s{S_T0}, s{S_W}, 11")
    a.e(f"v_add_u32 v{V_T}, s{S_T0}, v{V_T}")
    a.e(f"ds_write_b128 v{V_T}, v[{V_ACC}:{V_ACC + 3}] offset:{L_Y}")
    a.e(f"ds_write_b128 v{V_T}, v[{V_ACC + 4}:{V_ACC + 7}] offset:{L_Y + 16}")
    a.barrier()
    a.e(f"v_lshlrev_b32 v{V_T}, 3, v0")
    for w_ in range(4):
        a.e(f"ds_read_b64 v[{V_T2 + 2 * w_}:{V_T2 + 2 * w_ + 1}], v{V_T} offset:{L_Y + 2048 * w_}")
    a.lgkm0()
    for k in range(2):
        a.e(f"v_add_f32 v{V_T2 + k}, v{V_T2 + k}, v{V_T2 + 2 + k}")
        a.e(f"v_add_f32 v{V_T2 + 4 + k}, v{V_T2 + 4 + k}, v{V_T2 + 6 + k}")
    for k in range(2):
        a.e(f"v_add_f32 v{V_T2 + k}, v{V_T2 + k}, v{V_T2 + 4 + k}")
    a.e(f"s_lshl_b32 s{S_T0}, s{S_B}, 5")
    a.e(f"s_add_u32 s{S_T0}, s{S_T0}, s{S_H}")
    a.e(f"s_lshl_b32 s{S_T0}, s{S_T0}, 2")
    a.e(f"s_add_u32 s{S_T0}, s{S_T0}, s{S_S}")
    a.e(f"s_lshl_b32 s{S_T1}, s{S_T0}, 11")
    a.e(f"s_add_u32 s{S_T1}, s{S_T1}, 0x{WS_YA:x}")
    a.vm(f"buffer_store_dwordx2 v[{V_T2}:{V_T2 + 1}], v{V_T}, s[{SRD_WS}:{SRD_WS + 3}], s{S_T1} offen{sc}", "st")
    a.e(f"s_lshl_b32 s{S_T1}, s{S_T0}, 3")
    a.e(f"s_add_u32 s{S_T1}, s{S_T1}, 0x{WS_STA:x}")
    a.e(f"v_mov_b32 v{V_T + 1}, 0")
    a.e(f"v_cmp_eq_u32 vcc, 0, v0")
    a.e(f"s_and_saveexec_b64 s[{S_EX}:{S_EX + 1}], vcc")
    a.vm(f"buffer_store_dwordx2 v[{VG}:{VG + 1}], v{V_T + 1}, s[{SRD_WS}:{SRD_WS + 3}], s{S_T1} offen{sc}", "st")
    a.e(f"s_mov_b64 exec, s[{S_EX}:{S_EX + 1}]")
    a.wait_all_vm()
    if diag:
        stamp(a, 3, diag)
        a.e("s_waitcnt lgkmcnt(0)")
        a.e(f"s_lshl_b32 s{S_T1}, s{S_WG}, 6")
        a.e(f"s_add_u32 s{S_T1}, s{S_T1}, 0x{WS_DIAG:x}")
        a.e("s_mov_b64 exec, 1")
        for k in range(4):
            a.e(f"v_mov_b32 v{V_T + k}, s{S_STAMP + 2 * k}")
        a.e(f"v_mov_b32 v{V_T + 4}, 0")
        a.e(f"buffer_store_dwordx4 v[{V_T}:{V_T + 3}], v{V_T + 4}, s[{SRD_WS}:{SRD_WS + 3}], s{S_T1} offen")
        a.e("s_mov_b64 exec, -1")
        a.wait_all_vm()
    a.e("s_branch FIN")
```

```python
from gen_common import *
from gen_a import (S_SCALE, S_LOG2E, S_NLOG2E, S_SELLO, S_SELHI, V_L, V_R, V_CP, V_L16,
                   wrs_pairs, round_scale4, common_consts, lane_ids, S_W)

S_WG = 3
S_H, S_B, S_J = 4, 5, 6
S_T0, S_T1, S_T2 = 11, 12, 13
S_EX = 14
SRD_X, SRD_WQ, SRD_WUK, SRD_CKV, SRD_WUV, SRD_WS, SRD_WO = 44, 48, 52, 56, 60, 64, 80
S_O = 88
S_OP = 76

V_A0, V_A1, V_A2 = 5, 6, 7
V_ACC0, V_ACC1 = 8, 16
V_T = 24
V_T2 = 32
V_QF0, V_QF1 = 40, 44
V_V = 48
V_RING = 64
V_X = 192
B_VGPRS = 256

WS_STB3 = WS_STB
WS_PART3 = WS_PART


def slot(i):
    return V_RING + 32 * i


def b_preamble(a):
    a.c("================ ROLE B (v3) preamble ================")
    lane_ids(a)
    common_consts(a)
    make_srd(a, SRD_X, P_BX, 2048)
    make_srd(a, SRD_WQ, P_BWQ, 0x400000)
    make_srd(a, SRD_WUK, P_BWUK, 0x400000)
    make_srd(a, SRD_CKV, P_BCKV, 0x800000)
    make_srd(a, SRD_WUV, P_BWUV, 0x400000)
    make_srd(a, SRD_WS, P_WS, WS_BYTES)
    make_srd(a, SRD_WO, P_BWO, 0x400000)


def sum16(a, addr_v, l_src, vdst, scratch):
    for s_ in range(16):
        a.e(f"ds_read_b32 v{scratch + s_}, v{addr_v} offset:{l_src + 512 * s_}")
    a.lgkm0()
    a.e(f"v_add_f32 v{vdst}, v{scratch}, v{scratch + 1}")
    for k in range(2, 16):
        a.e(f"v_add_f32 v{vdst}, v{vdst}, v{scratch + k}")


def write_slot_partials(a, l_dst, two=True):
    a.e(f"v_lshlrev_b32 v{V_T}, 2, v{V_R}")
    a.e(f"s_lshl_b32 s{S_T0}, s{S_W}, 4")
    a.e(f"v_add_u32 v{V_T}, s{S_T0}, v{V_T}")
    a.e(f"v_lshlrev_b32 v{V_T}, 7, v{V_T}")
    a.e(f"v_lshl_add_u32 v{V_T}, v{V_CP}, 5, v{V_T}")
    a.e(f"ds_write_b128 v{V_T}, v[{V_ACC0}:{V_ACC0 + 3}] offset:{l_dst}")
    a.e(f"ds_write_b128 v{V_T}, v[{V_ACC0 + 4}:{V_ACC0 + 7}] offset:{l_dst + 16}")
    if two:
        a.e(f"ds_write_b128 v{V_T}, v[{V_ACC1}:{V_ACC1 + 3}] offset:{l_dst + 8192}")
        a.e(f"ds_write_b128 v{V_T}, v[{V_ACC1 + 4}:{V_ACC1 + 7}] offset:{l_dst + 8192 + 16}")


L1_Q1 = 0
L1_QB = 16384


def emit_b1(a, sc=""):
    a.c("---------------- B1 ----------------")
    a.e(f"s_lshr_b32 s{S_H}, s{S_WG}, 1")
    a.e(f"s_and_b32 s{S_J}, s{S_WG}, 1")
    XP0, XP1 = V_X, V_X + 16
    a.e(f"v_lshlrev_b32 v{V_A0}, 6, v{V_R}")
    a.e(f"s_lshl_b32 s{S_T0}, s{S_W}, 8")
    a.e(f"s_add_u32 s{S_T1}, s{S_T0}, 1024")
    for (xp, so) in ((XP0, S_T0), (XP1, S_T1)):
        for i in range(4):
            a.vm(f"buffer_load_dwordx4 v[{xp + 4 * i}:{xp + 4 * i + 3}], v{V_A0}, s[{SRD_X}:{SRD_X + 3}], s{so} offen offset:{16 * i}", "x")
    a.e(f"v_lshlrev_b32 v{V_A1}, 18, v{V_R}")
    a.e(f"v_lshl_add_u32 v{V_A1}, v{V_CP}, 4, v{V_A1}")
    a.e(f"s_lshl_b32 s{S_T0}, s{S_W}, 20")
    a.e(f"s_lshl_b32 s{S_T1}, s{S_H}, 8")
    a.e(f"s_add_u32 s{S_O}, s{S_T0}, s{S_T1}")
    for jl in range(32):
        r0 = V_RING + 4 * jl
        a.vm(f"buffer_load_dwordx4 v[{r0}:{r0 + 3}], v{V_A1}, s[{SRD_WQ}:{SRD_WQ + 3}], s{S_O} offen", f"wq{jl // 8}")
        a.e(f"s_add_u32 s{S_O}, s{S_O}, 8192")
    for i in range(8):
        a.e(f"v_mov_b32 v{V_ACC0 + i}, 0")
        a.e(f"v_mov_b32 v{V_ACC1 + i}, 0")
    a.e(f"v_lshlrev_b32 v{V_A2}, 13, v{V_R}")
    a.e(f"v_lshl_add_u32 v{V_A2}, v{V_CP}, 4, v{V_A2}")
    a.e(f"s_lshl_b32 s{S_T0}, s{S_J}, 21")
    a.e(f"s_lshl_b32 s{S_T1}, s{S_W}, 19")
    a.e(f"s_add_u32 s{S_T0}, s{S_T0}, s{S_T1}")
    a.e(f"s_lshl_b32 s{S_T1}, s{S_H}, 8")
    a.e(f"s_add_u32 s{S_O + 1}, s{S_T0}, s{S_T1}")
    a.wait_vm("x")
    for bt in range(4):
        a.wait_vm(f"wq{bt}")
        for i in range(4):
            jl = 8 * bt + 2 * i
            wrs_pairs(a, V_RING + 4 * jl, V_RING + 4 * (jl + 1),
                      [f"v{XP0 + jl // 2}", f"v{XP1 + jl // 2}"], [V_ACC0, V_ACC1], V_T)
        if bt < 2:
            for jl in range(8 * bt, 8 * bt + 8):
                r0 = V_RING + 4 * jl
                a.vm(f"buffer_load_dwordx4 v[{r0}:{r0 + 3}], v{V_A2}, s[{SRD_WUK}:{SRD_WUK + 3}], s{S_O + 1} offen", f"wuk{bt}")
                a.e(f"s_add_u32 s{S_O + 1}, s{S_O + 1}, 32768")
    a.nop(4)
    write_slot_partials(a, L1_Q1)
    a.barrier()
    a.e(f"v_and_b32 v{V_T}, 127, v0")
    a.e(f"v_lshrrev_b32 v{V_T + 1}, 7, v0")
    a.e(f"v_lshlrev_b32 v{V_T + 2}, 13, v{V_T + 1}")
    a.e(f"v_lshl_add_u32 v{V_T + 2}, v{V_T}, 2, v{V_T + 2}")
    sum16(a, V_T + 2, L1_Q1, V_T + 3, V_X + 32)
    a.e(f"v_cvt_pk_bf16_f32 v{V_T + 3}, v{V_T + 3}, v{V_T + 3}")
    a.e(f"v_lshlrev_b32 v{V_T + 1}, 8, v{V_T + 1}")
    a.e(f"v_lshl_add_u32 v{V_T + 1}, v{V_T}, 1, v{V_T + 1}")
    a.e(f"ds_write_b16 v{V_T + 1}, v{V_T + 3} offset:{L1_QB}")
    a.barrier()
    a.e(f"v_lshlrev_b32 v{V_T}, 4, v{V_CP}")
    a.e(f"ds_read_b128 v[{V_QF0}:{V_QF0 + 3}], v{V_T} offset:{L1_QB}")
    a.e(f"ds_read_b128 v[{V_QF1}:{V_QF1 + 3}], v{V_T} offset:{L1_QB + 256}")
    a.lgkm0()
    a.e(f"s_lshr_b32 s{S_T0}, s{S_H}, 4")
    a.e(f"s_lshl_b32 s{S_T0}, s{S_T0}, 14")
    a.e(f"s_lshl_b32 s{S_T1}, s{S_J}, 3")
    a.e(f"s_lshl_b32 s{S_T2}, s{S_W}, 1")
    a.e(f"s_add_u32 s{S_T1}, s{S_T1}, s{S_T2}")
    a.e(f"s_lshl_b32 s{S_T1}, s{S_T1}, 10")
    a.e(f"s_add_u32 s{S_T0}, s{S_T0}, s{S_T1}")
    a.e(f"s_and_b32 s{S_T1}, s{S_H}, 15")
    a.e(f"s_lshl_b32 s{S_T1}, s{S_T1}, 4")
    a.e(f"s_add_u32 s{S_T0}, s{S_T0}, s{S_T1}")
    for k in range(4):
        a.e(f"s_add_u32 s{S_O + 2 + k}, s{S_T0}, 0x{WS_QC + 32768 * k:x}")
    a.e(f"v_lshlrev_b32 v{V_A0}, 1, v{V_R}")
    for half in range(2):
        a.wait_vm(f"wuk{half}")
        for jp in range(4):
            chains = [(8 * half + 2 * jp + dj, b) for dj in range(2) for b in range(2)]
            for i in range(4):
                for (jl, b) in chains:
                    d = V_V + 2 * (jl % 8) + b
                    qf = (V_QF0, V_QF1)[b]
                    src2 = "0" if i == 0 else f"v{d}"
                    a.e(f"v_dot2_f32_bf16 v{d}, v{V_RING + 4 * jl + i}, v{qf + i}, {src2}")
            for step in (8, 4, 2, 1):
                for (jl, b) in chains:
                    d = V_V + 2 * (jl % 8) + b
                    a.e(f"v_add_f32_dpp v{d}, v{d}, v{d} row_ror:{step} row_mask:0xf bank_mask:0xf")
        a.e(f"v_cmp_eq_u32 vcc, 0, v{V_CP}")
        a.e(f"s_and_saveexec_b64 s[{S_EX}:{S_EX + 1}], vcc")
        for jl8 in range(8):
            for b in range(2):
                d = V_V + 2 * jl8 + b
                imm = half * 1024 + (jl8 >> 1) * 256 + 8 * (jl8 & 1)
                a.e(f"v_cvt_pk_bf16_f32 v{V_T}, v{d}, v{d}")
                a.e(f"v_lshlrev_b32 v{V_T + 1}, 16, v{V_T}")
                a.e(f"v_sub_f32 v{V_T + 1}, v{d}, v{V_T + 1}")
                a.e(f"v_cvt_pk_bf16_f32 v{V_T + 1}, v{V_T + 1}, v{V_T + 1}")
                a.vm(f"buffer_store_short v{V_T}, v{V_A0}, s[{SRD_WS}:{SRD_WS + 3}], s{S_O + 2 + 2 * b} offen offset:{imm}{sc}", "qcst")
                a.vm(f"buffer_store_short v{V_T + 1}, v{V_A0}, s[{SRD_WS}:{SRD_WS + 3}], s{S_O + 3 + 2 * b} offen offset:{imm}{sc}", "qcst")
                a.nop(1)
        a.e(f"s_mov_b64 exec, s[{S_EX}:{S_EX + 1}]")
        a.nop(4)


PS = 272
L2_P = 0
L2_MX = 8704
L2_LS = 10752
L2_T = 12800
RS = 1040
B2_LDS = L2_T + 128 * RS


def emit_b2_prefetch(a):
    a.c("---------------- B2 prefetch (c_kv tile -> LDS) ----------------")
    a.e(f"s_lshr_b32 s{S_B}, s{S_WG}, 5")
    a.e(f"s_and_b32 s{S_J}, s{S_WG}, 31")
    a.e(f"s_lshl_b32 s{S_T0}, s{S_B}, 12")
    a.e(f"s_lshl_b32 s{S_T1}, s{S_J}, 7")
    a.e(f"s_add_u32 s{S_T0}, s{S_T0}, s{S_T1}")
    a.e(f"s_lshl_b32 s{S_T1}, s{S_W}, 5")
    a.e(f"s_add_u32 s{S_T0}, s{S_T0}, s{S_T1}")
    a.e(f"s_lshl_b32 s{S_O}, s{S_T0}, 10")
    a.e(f"s_mul_i32 s{S_T0}, s{S_W}, {32 * RS}")
    a.e(f"v_add_u32 v{V_A0}, s{S_T0}, v{V_L16}")
    for i in range(32):
        r0 = V_RING + 4 * i
        a.vm(f"buffer_load_dwordx4 v[{r0}:{r0 + 3}], v{V_L16}, s[{SRD_CKV}:{SRD_CKV + 3}], s{S_O} offen offset:{1024 * (i % 4)}", f"ckv{i // 16}")
        if i % 4 == 3:
            a.e(f"s_add_u32 s{S_O}, s{S_O}, 4096")
    for hb in range(2):
        a.wait_vm(f"ckv{hb}")
        for i in range(16 * hb, 16 * hb + 16):
            a.e(f"ds_write_b128 v{V_A0}, v[{V_RING + 4 * i}:{V_RING + 4 * i + 3}] offset:{L2_T + RS * i}")
    a.lgkm0()


def emit_b2_main(a, sc=""):
    a.c("---------------- B2 main ----------------")
    a.e(f"s_lshl_b32 s{S_T0}, s{S_B}, 16")
    for k in range(4):
        a.e(f"s_add_u32 s{S_O + 1 + k}, s{S_T0}, 0x{WS_QC + 16384 * k:x}")

    def issue_qc(kp):
        sl = slot(kp % 4)
        for dk in range(2):
            for k in range(4):
                r0 = sl + 16 * dk + 4 * k
                a.vm(f"buffer_load_dwordx4 v[{r0}:{r0 + 3}], v{V_L16}, s[{SRD_WS}:{SRD_WS + 3}], s{S_O + 1 + k} offen offset:{1024 * dk}{sc}", f"qc{kp}")
        for k in range(4):
            a.e(f"s_add_u32 s{S_O + 1 + k}, s{S_O + 1 + k}, 2048")

    for kp in range(4):
        issue_qc(kp)
    a.barrier()
    a.e(f"v_mul_u32_u24 v{V_A1}, {RS}, v{V_CP}")
    a.e(f"v_lshl_add_u32 v{V_A1}, v{V_R}, 4, v{V_A1}")
    a.e(f"s_mul_i32 s{S_T0}, s{S_W}, {32 * RS}")
    a.e(f"v_add_u32 v{V_A1}, s{S_T0}, v{V_A1}")
    SA = V_V
    for i in range(16):
        a.e(f"v_mov_b32 v{SA + i}, 0")
    AF = V_X
    for kp in range(8):
        sl = slot(kp % 4)
        for dk in range(2):
            for mt in range(2):
                r0 = AF + 8 * dk + 4 * mt
                a.e(f"ds_read_b128 v[{r0}:{r0 + 3}], v{V_A1} offset:{L2_T + 64 * (2 * kp + dk) + 16 * RS * mt}")
        a.wait_vm(f"qc{kp}")
        a.lgkm0()
        for dk in range(2):
            for k in range(4):
                hg = k & 1
                r0 = sl + 16 * dk + 4 * k
                for mt in range(2):
                    d = SA + 8 * mt + 4 * hg
                    af = AF + 8 * dk + 4 * mt
                    a.e(f"v_mfma_f32_16x16x32_bf16 v[{d}:{d + 3}], v[{af}:{af + 3}], v[{r0}:{r0 + 3}], v[{d}:{d + 3}]")
        if kp + 4 < 8:
            issue_qc(kp + 4)
    a.nop(10)
    U = V_X + 16
    for q in range(4):
        round_scale4(a, SA + 4 * q, U + 4 * q, V_T)
    a.e(f"v_lshlrev_b32 v{V_A0}, 6, v{V_CP}")
    a.e(f"v_lshl_add_u32 v{V_A2}, v{V_R}, 2, v{V_A0}")
    a.e(f"s_lshl_b32 s{S_T0}, s{S_W}, 4")
    a.e(f"v_add_u32 v{V_A2}, s{S_T0}, v{V_A2}")
    for hg in range(2):
        u0, u1 = U + 4 * hg, U + 8 + 4 * hg
        a.e(f"v_max3_f32 v{V_T + hg}, v{u0}, v{u0 + 1}, v{u0 + 2}")
        a.e(f"v_max3_f32 v{V_T + hg}, v{V_T + hg}, v{u0 + 3}, v{u1}")
        a.e(f"v_max3_f32 v{V_T + hg}, v{V_T + hg}, v{u1 + 1}, v{u1 + 2}")
        a.e(f"v_max_f32 v{V_T + hg}, v{V_T + hg}, v{u1 + 3}")
    for hg in range(2):
        a.e(f"ds_write_b32 v{V_A2}, v{V_T + hg} offset:{L2_MX + 1024 * hg}")
    a.barrier()
    MXR = V_X + 32
    for hg in range(2):
        for k in range(4):
            a.e(f"ds_read_b128 v[{MXR + 16 * hg + 4 * k}:{MXR + 16 * hg + 4 * k + 3}], v{V_A0} offset:{L2_MX + 1024 * hg + 16 * k}")
    a.lgkm0()
    for hg in range(2):
        b0 = MXR + 16 * hg
        a.e(f"v_max3_f32 v{V_T2 + hg}, v{b0}, v{b0 + 1}, v{b0 + 2}")
        for i in range(3, 15, 2):
            a.e(f"v_max3_f32 v{V_T2 + hg}, v{V_T2 + hg}, v{b0 + i}, v{b0 + i + 1}")
        a.e(f"v_max_f32 v{V_T2 + hg}, v{V_T2 + hg}, v{b0 + 15}")
    for hg in range(2):
        a.e(f"v_mul_f32 v{V_T2 + 2 + hg}, s{S_NLOG2E}, v{V_T2 + hg}")
    for mt in range(2):
        for hg in range(2):
            for i in range(4):
                u = U + 8 * mt + 4 * hg + i
                a.e(f"v_fma_f32 v{u}, v{u}, s{S_LOG2E}, v{V_T2 + 2 + hg}")
    for i in range(16):
        a.e(f"v_exp_f32 v{U + i}, v{U + i}")
    a.nop(1)
    for hg in range(2):
        u0, u1 = U + 4 * hg, U + 8 + 4 * hg
        a.e(f"v_add_f32 v{V_T + hg}, v{u0}, v{u0 + 1}")
        a.e(f"v_add_f32 v{V_T + 2 + hg}, v{u0 + 2}, v{u0 + 3}")
        a.e(f"v_add_f32 v{V_T + 4 + hg}, v{u1}, v{u1 + 1}")
        a.e(f"v_add_f32 v{V_T + 6 + hg}, v{u1 + 2}, v{u1 + 3}")
    for hg in range(2):
        a.e(f"v_add_f32 v{V_T + hg}, v{V_T + hg}, v{V_T + 2 + hg}")
        a.e(f"v_add_f32 v{V_T + 4 + hg}, v{V_T + 4 + hg}, v{V_T + 6 + hg}")
    for hg in range(2):
        a.e(f"v_add_f32 v{V_T + hg}, v{V_T + hg}, v{V_T + 4 + hg}")
    for hg in range(2):
        a.e(f"ds_write_b32 v{V_A2}, v{V_T + hg} offset:{L2_LS + 1024 * hg}")
    a.e(f"v_mul_u32_u24 v{V_A2}, {PS}, v{V_CP}")
    a.e(f"v_lshl_add_u32 v{V_T + 4}, v{V_R}, 3, v{V_A2}")
    a.e(f"s_lshl_b32 s{S_T0}, s{S_W}, 6")
    a.e(f"v_add_u32 v{V_T + 4}, s{S_T0}, v{V_T + 4}")
    for mt in range(2):
        for hg in range(2):
            u = U + 8 * mt + 4 * hg
            a.e(f"v_cvt_pk_bf16_f32 v{V_T + 6}, v{u}, v{u + 1}")
            a.e(f"v_cvt_pk_bf16_f32 v{V_T + 7}, v{u + 2}, v{u + 3}")
            a.e(f"ds_write_b64 v{V_T + 4}, v[{V_T + 6}:{V_T + 7}] offset:{L2_P + 16 * PS * hg + 32 * mt}")
    a.barrier()
    a.e(f"s_cmp_eq_u32 s{S_W}, 0")
    a.e(f"s_cbranch_scc0 B2_nostats")
    a.e(f"v_and_b32 v{V_T}, 31, v{V_L}")
    a.e(f"v_lshlrev_b32 v{V_T + 1}, 6, v{V_T}")
    for k in range(4):
        a.e(f"ds_read_b128 v[{MXR + 4 * k}:{MXR + 4 * k + 3}], v{V_T + 1} offset:{L2_MX + 16 * k}")
        a.e(f"ds_read_b128 v[{MXR + 16 + 4 * k}:{MXR + 16 + 4 * k + 3}], v{V_T + 1} offset:{L2_LS + 16 * k}")
    a.lgkm0()
    a.e(f"v_max3_f32 v{V_T + 2}, v{MXR}, v{MXR + 1}, v{MXR + 2}")
    for i in range(3, 15, 2):
        a.e(f"v_max3_f32 v{V_T + 2}, v{V_T + 2}, v{MXR + i}, v{MXR + i + 1}")
    a.e(f"v_max_f32 v{V_T + 2}, v{V_T + 2}, v{MXR + 15}")
    a.e(f"v_add_f32 v{V_T + 3}, v{MXR + 16}, v{MXR + 17}")
    for i in range(2, 16):
        a.e(f"v_add_f32 v{V_T + 3}, v{V_T + 3}, v{MXR + 16 + i}")
    a.e(f"s_lshl_b32 s{S_T0}, s{S_B}, 5")
    a.e(f"s_add_u32 s{S_T0}, s{S_T0}, s{S_J}")
    a.e(f"s_lshl_b32 s{S_T0}, s{S_T0}, 8")
    a.e(f"s_add_u32 s{S_T0}, s{S_T0}, 0x{WS_STB3:x}")
    a.e(f"v_lshlrev_b32 v{V_T + 1}, 3, v{V_T}")
    a.vm(f"buffer_store_dwordx2 v[{V_T + 2}:{V_T + 3}], v{V_T + 1}, s[{SRD_WS}:{SRD_WS + 3}], s{S_T0} offen{sc}", "stb")
    a.lbl("B2_nostats")
    a.c("PV")
    PA = V_X
    a.e(f"v_mul_u32_u24 v{V_A2}, {PS}, v{V_CP}")
    a.e(f"v_lshl_add_u32 v{V_A2}, v{V_R}, 4, v{V_A2}")
    for hg in range(2):
        for kk2 in range(4):
            r0 = PA + 16 * hg + 4 * kk2
            a.e(f"ds_read_b128 v[{r0}:{r0 + 3}], v{V_A2} offset:{L2_P + 16 * PS * hg + 64 * kk2}")
    a.e(f"v_lshrrev_b32 v{V_T}, 2, v{V_CP}")
    a.e(f"v_lshl_add_u32 v{V_T}, v{V_R}, 3, v{V_T}")
    a.e(f"v_mul_u32_u24 v{V_T}, {RS}, v{V_T}")
    a.e(f"v_and_b32 v{V_T + 1}, 3, v{V_CP}")
    a.e(f"v_lshl_add_u32 v{V_T}, v{V_T + 1}, 3, v{V_T}")
    a.e(f"s_lshl_b32 s{S_T0}, s{S_W}, 8")
    a.e(f"v_add_u32 v{V_A2}, s{S_T0}, v{V_T}")
    a.e(f"v_add_u32 v{V_A1}, {64 * RS}, v{V_A2}")
    ACC = V_RING
    for i in range(64):
        a.e(f"v_mov_b32 v{ACC + i}, 0")
    BF = V_RING + 64
    for kk2 in range(4):
        base_v = V_A2 if kk2 < 2 else V_A1
        for ct in range(8):
            off = L2_T + (kk2 % 2) * 32 * RS + ct * 32
            a.e(f"ds_read_b64_tr_b16 v[{BF + 4 * ct}:{BF + 4 * ct + 1}], v{base_v} offset:{off}")
            a.e(f"ds_read_b64_tr_b16 v[{BF + 4 * ct + 2}:{BF + 4 * ct + 3}], v{base_v} offset:{off + 4 * RS}")
        a.lgkm0()
        for ct in range(8):
            for hg in range(2):
                d = ACC + 8 * ct + 4 * hg
                pa = PA + 16 * hg + 4 * kk2
                a.e(f"v_mfma_f32_16x16x32_bf16 v[{d}:{d + 3}], v[{pa}:{pa + 3}], v[{BF + 4 * ct}:{BF + 4 * ct + 3}], v[{d}:{d + 3}]")
        a.nop(8)
    a.nop(4)
    a.barrier()
    a.e(f"v_lshlrev_b32 v{V_A0}, 11, v{V_R}")
    a.e(f"v_lshl_add_u32 v{V_A0}, v{V_CP}, 2, v{V_A0}")
    a.e(f"s_lshl_b32 s{S_T0}, s{S_W}, 14")
    a.e(f"v_add_u32 v{V_A0}, s{S_T0}, v{V_A0}")
    for ct in range(8):
        for hg in range(2):
            for i in range(4):
                a.e(f"ds_write_b32 v{V_A0}, v{ACC + 8 * ct + 4 * hg + i} offset:{L2_T + (16 * hg + i) * 512 + 64 * ct}")
    a.lgkm0()
    a.e(f"v_lshrrev_b32 v{V_A1}, 5, v{V_L}")
    a.e(f"v_lshlrev_b32 v{V_A1}, 9, v{V_A1}")
    a.e(f"v_and_b32 v{V_T}, 31, v{V_L}")
    a.e(f"v_lshl_add_u32 v{V_A1}, v{V_T}, 4, v{V_A1}")
    a.e(f"v_add_u32 v{V_A1}, s{S_T0}, v{V_A1}")
    for it in range(16):
        a.e(f"ds_read_b128 v[{BF + 4 * (it % 8)}:{BF + 4 * (it % 8) + 3}], v{V_A1} offset:{L2_T + 1024 * it}")
        if it % 8 == 7:
            a.lgkm0()
            if it == 7:
                a.e(f"v_lshrrev_b32 v{V_A2}, 5, v{V_L}")
                a.e(f"v_lshlrev_b32 v{V_A2}, 11, v{V_A2}")
                a.e(f"v_lshl_add_u32 v{V_A2}, v{V_T}, 4, v{V_A2}")
                a.e(f"s_lshl_b32 s{S_T1}, s{S_B}, 5")
                a.e(f"s_add_u32 s{S_T1}, s{S_T1}, s{S_J}")
                a.e(f"s_lshl_b32 s{S_T1}, s{S_T1}, 16")
                a.e(f"s_add_u32 s{S_T1}, s{S_T1}, 0x{WS_PART3:x}")
                a.e(f"s_lshl_b32 s{S_T2}, s{S_W}, 9")
                a.e(f"s_add_u32 s{S_O}, s{S_T1}, s{S_T2}")
            for k in range(8):
                a.vm(f"buffer_store_dwordx4 v[{BF + 4 * k}:{BF + 4 * k + 3}], v{V_A2}, s[{SRD_WS}:{SRD_WS + 3}], s{S_O} offen{sc}", "part")
                a.e(f"s_add_u32 s{S_O}, s{S_O}, 4096")
            a.nop(2)


L3_CC = 0
L3_R2 = 8192
L3_Y = 16384
L3_WO = 24576
B3_LDS = 24576 + 131072


def wave_allreduce(a, v, t, op):
    ins = "v_max_f32" if op == "max" else "v_add_f32"
    a.nop(2)
    for step in (8, 4, 2, 1):
        a.e(f"{ins}_dpp v{v}, v{v}, v{v} row_ror:{step} row_mask:0xf bank_mask:0xf")
        a.nop(2)
    a.e(f"v_mov_b32 v{t}, v{v}")
    a.nop(2)
    a.e(f"v_permlane16_swap_b32 v{v}, v{t}")
    a.e(f"{ins} v{v}, v{v}, v{t}")
    a.e(f"v_mov_b32 v{t}, v{v}")
    a.nop(2)
    a.e(f"v_permlane32_swap_b32 v{v}, v{t}")
    a.e(f"{ins} v{v}, v{v}, v{t}")


def emit_b3_prefetch(a):
    a.c("---------------- B3 prefetch ----------------")
    a.e(f"s_lshr_b32 s{S_H}, s{S_WG}, 1")
    a.e(f"s_and_b32 s{S_B}, s{S_WG}, 1")
    a.e(f"s_lshl_b32 s{S_T0}, s{S_H}, 17")
    a.e(f"s_lshl_b32 s{S_T1}, s{S_W}, 15")
    a.e(f"s_add_u32 s{S_O}, s{S_T0}, s{S_T1}")
    a.e(f"v_add_u32 v{V_A0}, s{S_T1}, v{V_L16}")
    for hb in range(2):
        for i in range(16):
            r0 = V_X + 4 * i
            a.vm(f"buffer_load_dwordx4 v[{r0}:{r0 + 3}], v{V_L16}, s[{SRD_WO}:{SRD_WO + 3}], s{S_O} offen offset:{1024 * (i % 4)}", f"wol{hb}")
            if i % 4 == 3:
                a.e(f"s_add_u32 s{S_O}, s{S_O}, 4096")
        a.wait_vm(f"wol{hb}")
        for i in range(16):
            a.e(f"ds_write_b128 v{V_A0}, v[{V_X + 4 * i}:{V_X + 4 * i + 3}] offset:{L3_WO + 1024 * (16 * hb + i)}")
        a.lgkm0()
    a.e(f"v_lshlrev_b32 v{V_A2}, 18, v{V_R}")
    a.e(f"v_lshl_add_u32 v{V_A2}, v{V_CP}, 4, v{V_A2}")
    a.e(f"s_lshl_b32 s{S_T0}, s{S_W}, 20")
    a.e(f"s_lshl_b32 s{S_T1}, s{S_H}, 8")
    a.e(f"s_add_u32 s{S_O + 1}, s{S_T0}, s{S_T1}")
    for jl in range(32):
        r0 = V_RING + 4 * jl
        a.vm(f"buffer_load_dwordx4 v[{r0}:{r0 + 3}], v{V_A2}, s[{SRD_WUV}:{SRD_WUV + 3}], s{S_O + 1} offen", "wuv")
        a.e(f"s_add_u32 s{S_O + 1}, s{S_O + 1}, 8192")


def emit_b3_main(a, sc=""):
    a.c("---------------- B3 main ----------------")
    a.e(f"v_and_b32 v{V_T2}, 31, v{V_L}")
    a.e(f"v_lshlrev_b32 v{V_A0}, 8, v{V_T2}")
    a.e(f"s_lshl_b32 s{S_T0}, s{S_B}, 13")
    a.e(f"s_lshl_b32 s{S_T1}, s{S_H}, 3")
    a.e(f"s_add_u32 s{S_T0}, s{S_T0}, s{S_T1}")
    a.e(f"s_add_u32 s{S_T0}, s{S_T0}, 0x{WS_STB3:x}")
    a.vm(f"buffer_load_dwordx2 v[{V_T}:{V_T + 1}], v{V_A0}, s[{SRD_WS}:{SRD_WS + 3}], s{S_T0} offen{sc}", "st")
    a.e(f"v_lshlrev_b32 v{V_A1}, 5, v{V_L}")
    a.e(f"s_lshl_b32 s{S_T0}, s{S_B}, 21")
    a.e(f"s_lshl_b32 s{S_T1}, s{S_W}, 19")
    a.e(f"s_add_u32 s{S_T0}, s{S_T0}, s{S_T1}")
    a.e(f"s_lshl_b32 s{S_T1}, s{S_H}, 11")
    a.e(f"s_add_u32 s{S_T0}, s{S_T0}, s{S_T1}")
    a.e(f"s_add_u32 s{S_O + 2}, s{S_T0}, 0x{WS_PART3:x}")
    for c in range(8):
        for k in range(2):
            r0 = V_X + 8 * c + 4 * k
            a.vm(f"buffer_load_dwordx4 v[{r0}:{r0 + 3}], v{V_A1}, s[{SRD_WS}:{SRD_WS + 3}], s{S_O + 2} offen offset:{16 * k}{sc}", "part")
        a.e(f"s_add_u32 s{S_O + 2}, s{S_O + 2}, 65536")
    a.wait_vm("st")
    CO = V_T + 4
    a.e(f"v_mov_b32 v{V_T2 + 2}, v{V_T}")
    wave_allreduce(a, V_T2 + 2, V_T2 + 3, "max")
    a.e(f"v_sub_f32 v{V_T2 + 2}, v{V_T}, v{V_T2 + 2}")
    a.e(f"v_mul_f32 v{V_T2 + 2}, s{S_LOG2E}, v{V_T2 + 2}")
    a.e(f"v_exp_f32 v{CO}, v{V_T2 + 2}")
    a.nop(1)
    a.e(f"v_mul_f32 v{V_T2 + 2}, v{CO}, v{V_T + 1}")
    wave_allreduce(a, V_T2 + 2, V_T2 + 3, "add")
    a.e(f"v_mul_f32 v{V_T2 + 2}, 0.5, v{V_T2 + 2}")
    a.e(f"v_rcp_f32 v{V_T2 + 2}, v{V_T2 + 2}")
    a.nop(1)
    a.e(f"v_mul_f32 v{CO}, v{CO}, v{V_T2 + 2}")
    a.nop(2)
    for i in range(8):
        a.e(f"v_mov_b32 v{V_ACC0 + i}, 0")
    a.e(f"s_lshl_b32 s{S_T2}, s{S_W}, 3")
    a.wait_vm("part")
    for c in range(8):
        a.e(f"s_add_u32 s{S_T0}, s{S_T2}, {c}")
        a.e(f"v_readlane_b32 s{S_T1}, v{CO}, s{S_T0}")
        a.nop(2)
        for i in range(8):
            a.e(f"v_fmac_f32 v{V_ACC0 + i}, s{S_T1}, v{V_X + 8 * c + i}")
    a.e(f"s_lshl_b32 s{S_T0}, s{S_W}, 11")
    a.e(f"v_add_u32 v{V_A0}, s{S_T0}, v{V_A1}")
    a.e(f"ds_write_b128 v{V_A0}, v[{V_ACC0}:{V_ACC0 + 3}] offset:{L3_CC}")
    a.e(f"ds_write_b128 v{V_A0}, v[{V_ACC0 + 4}:{V_ACC0 + 7}] offset:{L3_CC + 16}")
    a.barrier()
    a.e(f"v_lshlrev_b32 v{V_A0}, 7, v{V_R}")
    a.e(f"s_lshl_b32 s{S_T0}, s{S_W}, 9")
    a.e(f"v_add_u32 v{V_A0}, s{S_T0}, v{V_A0}")
    WW = V_X
    for w_ in range(4):
        for k in range(8):
            r0 = WW + (0 if w_ == 0 else 32) + 4 * k
            a.e(f"ds_read_b128 v[{r0}:{r0 + 3}], v{V_A0} offset:{L3_CC + 2048 * w_ + 16 * k}")
        if w_ > 0:
            a.lgkm0()
            for i in range(32):
                a.e(f"v_add_f32 v{WW + i}, v{WW + i}, v{WW + 32 + i}")
    for i in range(8):
        a.e(f"v_mov_b32 v{V_ACC0 + i}, 0")
    a.wait_vm("wuv")
    for jl in range(32):
        r0 = V_RING + 4 * jl
        for k in range(4):
            a.e(f"v_lshlrev_b32 v{V_T + k}, 16, v{r0 + k}")
            a.e(f"v_and_b32 v{V_T + 4 + k}, 0xffff0000, v{r0 + k}")
        for k in range(4):
            a.e(f"v_fmac_f32 v{V_ACC0 + 2 * k}, v{WW + jl}, v{V_T + k}")
            a.e(f"v_fmac_f32 v{V_ACC0 + 2 * k + 1}, v{WW + jl}, v{V_T + 4 + k}")
    write_slot_partials(a, L3_R2, two=False)
    a.barrier()
    a.e(f"v_and_b32 v{V_T}, 31, v{V_L}")
    a.e(f"s_lshl_b32 s{S_T0}, s{S_W}, 5")
    a.e(f"v_add_u32 v{V_T}, s{S_T0}, v{V_T}")
    a.e(f"v_lshlrev_b32 v{V_T}, 2, v{V_T}")
    sum16(a, V_T, L3_R2, V_T + 1, V_X + 32)
    a.nop(2)
    a.e(f"v_mov_b32_dpp v{V_T + 2}, v{V_T + 1} quad_perm:[1,0,3,2] row_mask:0xf bank_mask:0xf")
    a.e(f"v_cvt_pk_bf16_f32 v{V_T + 3}, v{V_T + 1}, v{V_T + 2}")
    a.nop(2)
    SP = 96
    SP = 16
    for i in range(16):
        a.e(f"v_readlane_b32 s{SP + i}, v{V_T + 3}, {2 * i}")
    for i in range(8):
        a.e(f"v_mov_b32 v{V_ACC0 + i}, 0")
    a.e(f"s_lshl_b32 s{S_T0}, s{S_W}, 15")
    a.e(f"v_add_u32 v{V_A0}, s{S_T0}, v{V_L16}")
    a.nop(2)
    for kb in range(4):
        for k in range(8):
            r0 = V_X + 4 * k
            a.e(f"ds_read_b128 v[{r0}:{r0 + 3}], v{V_A0} offset:{L3_WO + 1024 * (8 * kb + k)}")
        a.lgkm0()
        for k in range(4):
            wrs_pairs(a, V_X + 8 * k, V_X + 8 * k + 4, [f"s{SP + 4 * kb + k}"], [V_ACC0], V_T)
    a.nop(4)
    a.e(f"v_lshlrev_b32 v{V_T}, 5, v{V_L}")
    a.e(f"s_lshl_b32 s{S_T0}, s{S_W}, 11")
    a.e(f"v_add_u32 v{V_T}, s{S_T0}, v{V_T}")
    a.e(f"ds_write_b128 v{V_T}, v[{V_ACC0}:{V_ACC0 + 3}] offset:{L3_Y}")
    a.e(f"ds_write_b128 v{V_T}, v[{V_ACC0 + 4}:{V_ACC0 + 7}] offset:{L3_Y + 16}")
    a.barrier()
    a.e(f"v_lshlrev_b32 v{V_T}, 3, v0")
    for w_ in range(4):
        a.e(f"ds_read_b64 v[{V_T2 + 2 * w_}:{V_T2 + 2 * w_ + 1}], v{V_T} offset:{L3_Y + 2048 * w_}")
    a.lgkm0()
    for k in range(2):
        a.e(f"v_add_f32 v{V_T2 + k}, v{V_T2 + k}, v{V_T2 + 2 + k}")
        a.e(f"v_add_f32 v{V_T2 + 4 + k}, v{V_T2 + 4 + k}, v{V_T2 + 6 + k}")
    for k in range(2):
        a.e(f"v_add_f32 v{V_T2 + k}, v{V_T2 + k}, v{V_T2 + 4 + k}")
    a.e(f"s_lshl_b32 s{S_T0}, s{S_B}, 5")
    a.e(f"s_add_u32 s{S_T0}, s{S_T0}, s{S_H}")
    a.e(f"s_lshl_b32 s{S_T0}, s{S_T0}, 11")
    a.e(f"s_add_u32 s{S_T0}, s{S_T0}, 0x{WS_YB:x}")
    a.vm(f"buffer_store_dwordx2 v[{V_T2}:{V_T2 + 1}], v{V_T}, s[{SRD_WS}:{SRD_WS + 3}], s{S_T0} offen{sc}", "yb")
```

```python
from gen_common import *

K3_NAME = "concat_fin_kernel"


def emit_k3(a):
    a.raw(kernel_header(K3_NAME))
    a.e("s_cmp_ge_u32 s2, 32")
    a.e("s_cbranch_scc1 K3_done")
    load_kernargs(a)
    SRD_WS, SRD_OUT = 44, 48
    make_srd(a, SRD_WS, P_WS, WS_BYTES)
    make_srd(a, SRD_OUT, P_OUT, 4096)
    a.e("s_lshr_b32 s4, s2, 4")
    a.e("s_lshr_b32 s5, s2, 3")
    a.e("s_and_b32 s5, s5, 1")
    a.e("s_and_b32 s6, s2, 7")
    a.e("v_readfirstlane_b32 s7, v0")
    a.nop(4)
    a.e("s_lshr_b32 s7, s7, 6")
    a.e("v_and_b32 v1, 63, v0")
    a.e(f"s_mov_b32 s69, 0x{LOG2E:08x}")
    a.e(f"s_mov_b32 s70, 0x{NEGLOG2E:08x}")
    a.e("v_mov_b32 v10, 0")
    a.e("s_cmp_eq_u32 s4, 0")
    a.e("s_cbranch_scc0 K3_partB")
    a.e("v_and_b32 v2, 31, v1")
    a.e("s_lshl_b32 s8, s5, 7")
    a.e("s_lshl_b32 s9, s7, 5")
    a.e("s_add_u32 s8, s8, s9")
    a.e("v_lshlrev_b32 v3, 3, v2")
    a.e("s_lshl_b32 s9, s8, 3")
    a.e(f"s_add_u32 s9, s9, 0x{WS_STA:x}")
    a.vm(f"buffer_load_dwordx2 v[4:5], v3, s[{SRD_WS}:{SRD_WS + 3}], s9 offen", "st")
    a.e("v_lshlrev_b32 v3, 2, v1")
    a.e("s_lshl_b32 s9, s8, 11")
    a.e("s_lshl_b32 s10, s6, 8")
    a.e("s_add_u32 s9, s9, s10")
    a.e(f"s_add_u32 s9, s9, 0x{WS_YA:x}")
    for p in range(32):
        if p % 4 != 3:
            a.vm(f"buffer_load_dword v{16 + p}, v3, s[{SRD_WS}:{SRD_WS + 3}], s9 offen", "y")
        a.e("s_add_u32 s9, s9, 2048")
    a.wait_vm("st")
    a.e("v_and_b32 v6, 3, v1")
    a.e("v_cmp_eq_u32 vcc, 3, v6")
    a.nop(2)
    a.e("v_mov_b32 v7, 0xff800000")
    a.e("v_cndmask_b32 v4, v4, v7, vcc")
    a.e("v_cndmask_b32 v5, v5, v10, vcc")
    a.nop(2)
    a.e("v_mov_b32_dpp v6, v4 quad_perm:[1,0,3,2] row_mask:0xf bank_mask:0xf")
    a.e("v_max_f32 v6, v6, v4")
    a.nop(2)
    a.e("v_mov_b32_dpp v7, v6 quad_perm:[2,3,0,1] row_mask:0xf bank_mask:0xf")
    a.e("v_max_f32 v6, v6, v7")
    a.e("v_sub_f32 v7, v4, v6")
    a.e("v_mul_f32 v7, s69, v7")
    a.e("v_exp_f32 v7, v7")
    a.nop(1)
    a.e("v_mul_f32 v8, v7, v5")
    a.nop(2)
    a.e("v_mov_b32_dpp v9, v8 quad_perm:[1,0,3,2] row_mask:0xf bank_mask:0xf")
    a.e("v_add_f32 v8, v8, v9")
    a.nop(2)
    a.e("v_mov_b32_dpp v9, v8 quad_perm:[2,3,0,1] row_mask:0xf bank_mask:0xf")
    a.e("v_add_f32 v8, v8, v9")
    a.e("v_rcp_f32 v8, v8")
    a.nop(1)
    a.e("v_mul_f32 v7, v7, v8")
    a.nop(2)
    for p in range(32):
        a.e(f"v_readlane_b32 s{16 + p}, v7, {p}")
    a.nop(4)
    a.wait_vm("y")
    for p in range(32):
        if p % 4 != 3:
            a.e(f"v_fma_f32 v10, s{16 + p}, v{16 + p}, v10")
    a.e("s_branch K3_reduce")
    a.lbl("K3_partB")
    a.e("v_lshlrev_b32 v3, 2, v1")
    a.e("s_lshl_b32 s8, s5, 5")
    a.e("s_lshl_b32 s9, s7, 3")
    a.e("s_add_u32 s8, s8, s9")
    a.e("s_lshl_b32 s9, s8, 11")
    a.e("s_lshl_b32 s10, s6, 8")
    a.e("s_add_u32 s9, s9, s10")
    a.e(f"s_add_u32 s9, s9, 0x{WS_YB:x}")
    for p in range(8):
        a.vm(f"buffer_load_dword v{16 + p}, v3, s[{SRD_WS}:{SRD_WS + 3}], s9 offen", "y")
        a.e("s_add_u32 s9, s9, 2048")
    a.wait_vm("y")
    for p in range(8):
        a.e(f"v_add_f32 v10, v10, v{16 + p}")
    a.lbl("K3_reduce")
    a.e("v_lshlrev_b32 v3, 2, v0")
    a.e("ds_write_b32 v3, v10")
    a.barrier()
    a.e("v_lshlrev_b32 v3, 2, v1")
    for w_ in range(4):
        a.e(f"ds_read_b32 v{12 + w_}, v3 offset:{256 * w_}")
    a.lgkm0()
    a.e("v_add_f32 v12, v12, v13")
    a.e("v_add_f32 v14, v14, v15")
    a.e("v_add_f32 v12, v12, v14")
    a.e("v_cvt_pk_bf16_f32 v12, v12, v12")
    a.e("s_cmp_eq_u32 s7, 0")
    a.e("s_cbranch_scc0 K3_done")
    a.e("s_lshl_b32 s8, s5, 10")
    a.e("s_lshl_b32 s9, s4, 9")
    a.e("s_add_u32 s8, s8, s9")
    a.e("s_lshl_b32 s9, s6, 6")
    a.e("s_add_u32 s8, s8, s9")
    a.e("s_lshl_b32 s8, s8, 1")
    a.e("v_lshlrev_b32 v3, 1, v1")
    a.vm(f"buffer_store_short v12, v3, s[{SRD_OUT}:{SRD_OUT + 3}], s8 offen", "o")
    a.wait_all_vm()
    a.lbl("K3_done")
    a.e("s_endpgm")
    return kernel_desc(K3_NAME, 48, 60)
```

```python
import sys
from gen_common import *
import gen_a3 as gen_a, gen_b3 as gen_b, gen_k3
MAIN = "concat_heads__mha_block_cached__compressed_kv_cla__decode_kernel"
HDR = open("concat_heads__mha_block_cached__compressed_kv_cla__decode.s.ref").read().split("; Override launch")[0]
opts = sys.argv[2:]
NB = 64
SRD_DBG = 84
SC = " sc1"
DIAG = "diag" in opts
V_ST = 240
stamps = []

def rstamp(a, k):
    if DIAG:
        a.e("s_memrealtime s[98:99]")
        a.e("s_waitcnt lgkmcnt(0)")
        a.e(f"v_writelane_b32 v255, s98, {k}")

def arrive(a, k):
    a.wait_all_vm()
    a.e("s_barrier")
    a.e(f"s_cmp_eq_u32 s{gen_b.S_W}, 0")
    a.e(f"s_cbranch_scc0 BAR_arr{k}")
    a.e(f"v_mov_b32 v{gen_b.V_T}, 1")
    a.e(f"v_mov_b32 v{gen_b.V_T + 1}, {64 * k}")
    a.e("s_mov_b64 exec, 1")
    a.e(f"buffer_atomic_add v{gen_b.V_T}, v{gen_b.V_T + 1}, s[{SRD_DBG}:{SRD_DBG + 3}], 0 offen sc1")
    a.e("s_mov_b64 exec, -1")
    a.lbl(f"BAR_arr{k}")

def wait(a, k, target):
    a.e(f"s_cmp_eq_u32 s{gen_b.S_W}, 0")
    a.e(f"s_cbranch_scc0 BAR_done{k}")
    a.e(f"v_mov_b32 v{gen_b.V_T + 1}, {64 * k}")
    a.e(f"s_mov_b32 s{gen_b.S_T2}, 0")
    a.lbl(f"BAR_poll{k}")
    a.e(f"buffer_load_dword v{gen_b.V_T}, v{gen_b.V_T + 1}, s[{SRD_DBG}:{SRD_DBG + 3}], 0 offen sc1")
    a.e("s_waitcnt vmcnt(0)")
    a.e(f"v_readfirstlane_b32 s{gen_b.S_T0}, v{gen_b.V_T}")
    a.nop(4)
    a.e(f"s_cmp_ge_u32 s{gen_b.S_T0}, {target}")
    a.e(f"s_cbranch_scc1 BAR_done{k}")
    a.e("s_sleep 1")
    a.e(f"s_add_u32 s{gen_b.S_T2}, s{gen_b.S_T2}, 1")
    a.e(f"s_cmp_lt_u32 s{gen_b.S_T2}, 0x40000")
    a.e(f"s_cbranch_scc1 BAR_poll{k}")
    a.lbl(f"BAR_done{k}")
    a.e("s_barrier")

a = Asm()
a.raw(kernel_header(MAIN))
a.e(f"s_cmp_ge_u32 s2, 256")
a.e("s_cbranch_scc1 MAIN_exit")
load_kernargs(a)
a.e(f"s_cmp_lt_u32 s2, {NB}")
a.e("s_cbranch_scc1 ROLE_B")
a.e(f"s_sub_u32 s{gen_a.S_WG}, s2, {NB}")
gen_a.emit_role_a(a, diag=DIAG)
a.lbl("ROLE_B")
a.e(f"s_mov_b32 s{gen_b.S_WG}, s2")
rstamp(a, 0)
gen_b.b_preamble(a)
make_srd(a, SRD_DBG, P_DBG, 256)
gen_b.emit_b1(a, SC)
rstamp(a, 1)
arrive(a, 0)
gen_b.emit_b2_prefetch(a)
wait(a, 0, NB)
rstamp(a, 2)
gen_b.emit_b2_main(a, SC)
rstamp(a, 3)
arrive(a, 1)
gen_b.emit_b3_prefetch(a)
wait(a, 1, NB)
rstamp(a, 4)
gen_b.emit_b3_main(a, "")
a.wait_all_vm()
rstamp(a, 5)
if DIAG:
    a.e(f"s_add_u32 s{gen_b.S_T1}, s{gen_b.S_WG}, 256")
    a.e(f"s_lshl_b32 s{gen_b.S_T1}, s{gen_b.S_T1}, 6")
    a.e(f"s_add_u32 s{gen_b.S_T1}, s{gen_b.S_T1}, 0x800000")
    a.e(f"v_lshlrev_b32 v{gen_b.V_T}, 2, v{gen_b.V_L}")
    a.e("v_cmp_gt_u32 vcc, 8, v1")
    a.e("s_and_saveexec_b64 s[14:15], vcc")
    a.e(f"buffer_store_dword v255, v{gen_b.V_T}, s[{gen_b.SRD_WS}:{gen_b.SRD_WS + 3}], s{gen_b.S_T1} offen")
    a.e("s_mov_b64 exec, s[14:15]")
    a.wait_all_vm()
a.lbl("MAIN_exit")
a.e("s_endpgm")
k3 = Asm(); d3 = gen_k3.emit_k3(k3)
lds = max(gen_a.A_LDS, gen_b.B2_LDS, gen_b.B3_LDS, 17408)
out = HDR
out += f"; @launch kernel={MAIN} grid=(256,1,1) block=(256,1,1) lds={lds}\n"
out += f"; @launch kernel={gen_k3.K3_NAME} grid=(32,1,1) block=(256,1,1) lds=1024\n"
out += '.amdgcn_target "amdgcn-amd-amdhsa--gfx950"\n.text\n' + a.text() + k3.text()
out += '.section .rodata,"a"\n.p2align 6\n' + kernel_desc(MAIN, 256) + ".p2align 6\n" + d3
open(sys.argv[1], "w").write(out)
```

```python
from gen_common import *

K3_NAME = "concat_fin_kernel"


def emit_k3(a):
    a.raw(kernel_header(K3_NAME))
    a.e("s_cmp_ge_u32 s2, 32")
    a.e("s_cbranch_scc1 K3_done")
    load_kernargs(a)
    emit_k3_body(a, "")
    return kernel_desc(K3_NAME, 48, 60)


def emit_k3_body(a, sc):
    SRD_WS, SRD_OUT = 44, 48
    make_srd(a, SRD_WS, P_WS, WS_BYTES)
    make_srd(a, SRD_OUT, P_OUT, 4096)
    a.e("s_lshr_b32 s4, s2, 4")
    a.e("s_lshr_b32 s5, s2, 3")
    a.e("s_and_b32 s5, s5, 1")
    a.e("s_and_b32 s6, s2, 7")
    a.e("v_readfirstlane_b32 s7, v0")
    a.nop(4)
    a.e("s_lshr_b32 s7, s7, 6")
    a.e("v_and_b32 v1, 63, v0")
    a.e(f"s_mov_b32 s69, 0x{LOG2E:08x}")
    a.e(f"s_mov_b32 s70, 0x{NEGLOG2E:08x}")
    a.e("v_mov_b32 v10, 0")
    a.e("s_cmp_eq_u32 s4, 0")
    a.e("s_cbranch_scc0 K3_partB")
    a.e("v_and_b32 v2, 31, v1")
    a.e("s_lshl_b32 s8, s5, 7")
    a.e("s_lshl_b32 s9, s7, 5")
    a.e("s_add_u32 s8, s8, s9")
    a.e("v_lshlrev_b32 v3, 3, v2")
    a.e("s_lshl_b32 s9, s8, 3")
    a.e(f"s_add_u32 s9, s9, 0x{WS_STA:x}")
    a.vm(f"buffer_load_dwordx2 v[4:5], v3, s[{SRD_WS}:{SRD_WS + 3}], s9 offen{sc}", "st")
    a.e("v_lshlrev_b32 v3, 2, v1")
    a.e("s_lshl_b32 s9, s8, 11")
    a.e("s_lshl_b32 s10, s6, 8")
    a.e("s_add_u32 s9, s9, s10")
    a.e(f"s_add_u32 s9, s9, 0x{WS_YA:x}")
    for p in range(32):
        if p % 4 != 3:
            a.vm(f"buffer_load_dword v{16 + p}, v3, s[{SRD_WS}:{SRD_WS + 3}], s9 offen{sc}", "y")
        a.e("s_add_u32 s9, s9, 2048")
    a.wait_vm("st")
    a.e("v_and_b32 v6, 3, v1")
    a.e("v_cmp_eq_u32 vcc, 3, v6")
    a.nop(2)
    a.e("v_mov_b32 v7, 0xff800000")
    a.e("v_cndmask_b32 v4, v4, v7, vcc")
    a.e("v_cndmask_b32 v5, v5, v10, vcc")
    a.nop(2)
    a.e("v_mov_b32_dpp v6, v4 quad_perm:[1,0,3,2] row_mask:0xf bank_mask:0xf")
    a.e("v_max_f32 v6, v6, v4")
    a.nop(2)
    a.e("v_mov_b32_dpp v7, v6 quad_perm:[2,3,0,1] row_mask:0xf bank_mask:0xf")
    a.e("v_max_f32 v6, v6, v7")
    a.e("v_sub_f32 v7, v4, v6")
    a.e("v_mul_f32 v7, s69, v7")
    a.e("v_exp_f32 v7, v7")
    a.nop(1)
    a.e("v_mul_f32 v8, v7, v5")
    a.nop(2)
    a.e("v_mov_b32_dpp v9, v8 quad_perm:[1,0,3,2] row_mask:0xf bank_mask:0xf")
    a.e("v_add_f32 v8, v8, v9")
    a.nop(2)
    a.e("v_mov_b32_dpp v9, v8 quad_perm:[2,3,0,1] row_mask:0xf bank_mask:0xf")
    a.e("v_add_f32 v8, v8, v9")
    a.e("v_rcp_f32 v8, v8")
    a.nop(1)
    a.e("v_mul_f32 v7, v7, v8")
    a.nop(2)
    for p in range(32):
        a.e(f"v_readlane_b32 s{16 + p}, v7, {p}")
    a.nop(4)
    a.wait_vm("y")
    for p in range(32):
        if p % 4 != 3:
            a.e(f"v_fma_f32 v10, s{16 + p}, v{16 + p}, v10")
    a.e("s_branch K3_reduce")
    a.lbl("K3_partB")
    a.e("v_lshlrev_b32 v3, 2, v1")
    a.e("s_lshl_b32 s8, s5, 5")
    a.e("s_lshl_b32 s9, s7, 3")
    a.e("s_add_u32 s8, s8, s9")
    a.e("s_lshl_b32 s9, s8, 11")
    a.e("s_lshl_b32 s10, s6, 8")
    a.e("s_add_u32 s9, s9, s10")
    a.e(f"s_add_u32 s9, s9, 0x{WS_YB:x}")
    for p in range(8):
        a.vm(f"buffer_load_dword v{16 + p}, v3, s[{SRD_WS}:{SRD_WS + 3}], s9 offen{sc}", "y")
        a.e("s_add_u32 s9, s9, 2048")
    a.wait_vm("y")
    for p in range(8):
        a.e(f"v_add_f32 v10, v10, v{16 + p}")
    a.lbl("K3_reduce")
    a.e("v_lshlrev_b32 v3, 2, v0")
    a.e("ds_write_b32 v3, v10")
    a.barrier()
    a.e("v_lshlrev_b32 v3, 2, v1")
    for w_ in range(4):
        a.e(f"ds_read_b32 v{12 + w_}, v3 offset:{256 * w_}")
    a.lgkm0()
    a.e("v_add_f32 v12, v12, v13")
    a.e("v_add_f32 v14, v14, v15")
    a.e("v_add_f32 v12, v12, v14")
    a.e("v_cvt_pk_bf16_f32 v12, v12, v12")
    a.e("s_cmp_eq_u32 s7, 0")
    a.e("s_cbranch_scc0 K3_done")
    a.e("s_lshl_b32 s8, s5, 10")
    a.e("s_lshl_b32 s9, s4, 9")
    a.e("s_add_u32 s8, s8, s9")
    a.e("s_lshl_b32 s9, s6, 6")
    a.e("s_add_u32 s8, s8, s9")
    a.e("s_lshl_b32 s8, s8, 1")
    a.e("v_lshlrev_b32 v3, 1, v1")
    a.vm(f"buffer_store_short v12, v3, s[{SRD_OUT}:{SRD_OUT + 3}], s8 offen", "o")
    a.wait_all_vm()
    a.lbl("K3_done")
    a.e("s_endpgm")
```

```python
import sys
from gen_common import *
import gen_a3 as gen_a, gen_b3 as gen_b, gen_k3
MAIN = "concat_heads__mha_block_cached__compressed_kv_cla__decode_kernel"
HDR = open("concat_heads__mha_block_cached__compressed_kv_cla__decode.s.ref").read().split("; Override launch")[0]
opts = sys.argv[2:]
NB = 64
SRD_DBG = 84
SC = " sc1"
DIAG = "diag" in opts
V_ST = 240
stamps = []

def rstamp(a, k):
    if DIAG:
        a.e("s_memrealtime s[74:75]")
        a.e("s_waitcnt lgkmcnt(0)")
        a.e(f"s_mov_b32 s{96 + k}, s74")

def arrive(a, k):
    a.wait_all_vm()
    a.e("s_barrier")
    a.e(f"s_cmp_eq_u32 s{gen_b.S_W}, 0")
    a.e(f"s_cbranch_scc0 BAR_arr{k}")
    a.e(f"v_mov_b32 v{gen_b.V_T}, 1")
    a.e(f"v_mov_b32 v{gen_b.V_T + 1}, {64 * k}")
    a.e("s_mov_b64 exec, 1")
    a.e(f"buffer_atomic_add v{gen_b.V_T}, v{gen_b.V_T + 1}, s[{SRD_DBG}:{SRD_DBG + 3}], 0 offen sc1")
    a.e("s_mov_b64 exec, -1")
    a.lbl(f"BAR_arr{k}")

def wait(a, k, target):
    a.e(f"s_cmp_eq_u32 s{gen_b.S_W}, 0")
    a.e(f"s_cbranch_scc0 BAR_done{k}")
    a.e(f"v_mov_b32 v{gen_b.V_T + 1}, {64 * k}")
    a.e(f"s_mov_b32 s{gen_b.S_T2}, 0")
    a.lbl(f"BAR_poll{k}")
    a.e(f"buffer_load_dword v{gen_b.V_T}, v{gen_b.V_T + 1}, s[{SRD_DBG}:{SRD_DBG + 3}], 0 offen sc1")
    a.e("s_waitcnt vmcnt(0)")
    a.e(f"v_readfirstlane_b32 s{gen_b.S_T0}, v{gen_b.V_T}")
    a.nop(4)
    a.e(f"s_cmp_ge_u32 s{gen_b.S_T0}, {target}")
    a.e(f"s_cbranch_scc1 BAR_done{k}")
    a.e("s_sleep 1")
    a.e(f"s_add_u32 s{gen_b.S_T2}, s{gen_b.S_T2}, 1")
    a.e(f"s_cmp_lt_u32 s{gen_b.S_T2}, 0x40000")
    a.e(f"s_cbranch_scc1 BAR_poll{k}")
    a.lbl(f"BAR_done{k}")
    a.e("s_barrier")

a = Asm()
a.raw(kernel_header(MAIN))
a.e(f"s_cmp_ge_u32 s2, 256")
a.e("s_cbranch_scc1 MAIN_exit")
load_kernargs(a)
a.e(f"s_cmp_lt_u32 s2, {NB}")
a.e("s_cbranch_scc1 ROLE_B")
a.e(f"s_sub_u32 s{gen_a.S_WG}, s2, {NB}")
gen_a.emit_role_a(a, sc=SC, diag=DIAG)
a.lbl("ROLE_B")
a.e(f"s_mov_b32 s{gen_b.S_WG}, s2")
rstamp(a, 0)
gen_b.b_preamble(a)
make_srd(a, SRD_DBG, P_DBG, 256)
gen_b.emit_b1(a, SC)
rstamp(a, 1)
arrive(a, 0)
gen_b.emit_b2_prefetch(a)
wait(a, 0, NB)
rstamp(a, 2)
gen_b.emit_b2_main(a, SC)
rstamp(a, 3)
arrive(a, 1)
gen_b.emit_b3_prefetch(a)
wait(a, 1, NB)
rstamp(a, 4)
gen_b.emit_b3_main(a, SC)
a.wait_all_vm()
rstamp(a, 5)
if False:
    a.e(f"s_add_u32 s{gen_b.S_T1}, s{gen_b.S_WG}, 256")
    a.e(f"s_lshl_b32 s{gen_b.S_T1}, s{gen_b.S_T1}, 6")
    a.e(f"s_add_u32 s{gen_b.S_T1}, s{gen_b.S_T1}, 0x800000")
    a.e(f"v_lshlrev_b32 v{gen_b.V_T}, 2, v{gen_b.V_L}")
    for k in range(6):
        a.e(f"v_writelane_b32 v255, s{96 + k}, {k}")
    a.e("v_cmp_gt_u32 vcc, 6, v1")
    a.e("s_and_saveexec_b64 s[14:15], vcc")
    a.e(f"buffer_store_dword v255, v{gen_b.V_T}, s[{gen_b.SRD_WS}:{gen_b.SRD_WS + 3}], s{gen_b.S_T1} offen")
    a.e("s_mov_b64 exec, s[14:15]")
    a.wait_all_vm()
a.lbl("FIN")
a.e("s_waitcnt vmcnt(0) lgkmcnt(0)")
a.e("s_barrier")
make_srd(a, SRD_DBG, P_DBG, 256)
a.e(f"s_cmp_eq_u32 s{gen_b.S_W}, 0")
a.e("s_cbranch_scc0 FIN_wait")
a.e("v_mov_b32 v24, 1")
a.e("v_mov_b32 v25, 192")
a.e("s_mov_b64 exec, 1")
a.e(f"buffer_atomic_add v24, v25, s[{SRD_DBG}:{SRD_DBG + 3}], 0 offen sc0 sc1")
a.e("s_waitcnt vmcnt(0)")
a.e("s_mov_b64 exec, -1")
a.e("v_readfirstlane_b32 s11, v24")
a.nop(4)
a.e("v_mov_b32 v24, s11")
a.e("v_mov_b32 v25, 0")
a.e("ds_write_b32 v25, v24")
a.lbl("FIN_wait")
a.barrier()
a.e("v_mov_b32 v25, 0")
a.e("ds_read_b32 v24, v25")
a.lgkm0()
a.e("v_readfirstlane_b32 s11, v24")
a.nop(4)
a.e("s_cmp_lt_u32 s11, 224")
a.e("s_cbranch_scc1 MAIN_exit")
a.e("s_sub_u32 s2, s11, 224")
a.e("s_barrier")
a.e(f"s_cmp_eq_u32 s{gen_b.S_W}, 0")
a.e("s_cbranch_scc0 FIN_go")
a.e("v_mov_b32 v25, 192")
a.e("s_mov_b32 s13, 0")
a.lbl("FIN_poll")
a.e(f"buffer_load_dword v24, v25, s[{SRD_DBG}:{SRD_DBG + 3}], 0 offen sc1")
a.e("s_waitcnt vmcnt(0)")
a.e("v_readfirstlane_b32 s11, v24")
a.nop(4)
a.e("s_cmp_ge_u32 s11, 256")
a.e("s_cbranch_scc1 FIN_go")
a.e("s_sleep 1")
a.e("s_add_u32 s13, s13, 1")
a.e("s_cmp_lt_u32 s13, 0x40000")
a.e("s_cbranch_scc1 FIN_poll")
a.lbl("FIN_go")
a.e("s_barrier")
gen_k3.emit_k3_body(a, SC)
a.lbl("MAIN_exit")
a.e("s_endpgm")
lds = max(gen_a.A_LDS, gen_b.B2_LDS, gen_b.B3_LDS, 17408)
out = HDR
out += f"; @launch kernel={MAIN} grid=(256,1,1) block=(256,1,1) lds={lds}\n"
out += '.amdgcn_target "amdgcn-amd-amdhsa--gfx950"\n.text\n' + a.text()
out += '.section .rodata,"a"\n.p2align 6\n' + kernel_desc(MAIN, 256)
open(sys.argv[1], "w").write(out)
```
